```python
import torch

def _softmax(x, axis=-1):
    return torch.softmax(x, dim=axis)
def _gelu(x):
    return torch.nn.functional.gelu(x, approximate="tanh")
def _silu(x):
    return torch.nn.functional.silu(x)
def _sigmoid(x):
    return torch.sigmoid(x)
def _layernorm(x, axis=-1, eps=1e-5):
    m = x.mean(dim=axis, keepdim=True)
    v = x.var(dim=axis, keepdim=True, unbiased=False)
    return (x - m) / torch.sqrt(v + eps)
def _scatter_add(tgt, idx, src, axis=0):
    return tgt.clone().index_add_(axis, idx, src)
def _segment_sum(src, seg, n):
    out = torch.zeros((n,) + src.shape[1:], dtype=src.dtype)
    return out.index_add_(0, seg, src)
def _pad(x, pw):
    flat = tuple(v for pair in reversed(pw) for v in pair)
    return torch.nn.functional.pad(x, flat)

kernel_name = 'recurrent_scan__mha_block_cached__geglu_ffn__decode'

def setup_inputs():

    _w = (lambda a: (lambda t: t.to(torch.bfloat16) if t.is_floating_point() else t)(torch.as_tensor(a)))
    def _A_setup():
        B, Sq, D = 2, 1, 640
        H, Sk, Dh = 32, 4096, 192
        return {
            "x": _w((lambda *s: torch.randn(*s, dtype=torch.bfloat16) * 0.05)(B, Sq, D)),
            "k_cache": _w((lambda *s: torch.randn(*s, dtype=torch.bfloat16) * 1.6)(B, H, Sk, Dh)),
            "v_cache": _w((lambda *s: torch.randn(*s, dtype=torch.bfloat16) * 0.2)(B, H, Sk, Dh)),
            "wq": _w((lambda *s: torch.randn(*s, dtype=torch.bfloat16) * 1.6)(D, H * Dh) * (D ** -0.5)),
            "wo": _w((lambda *s: torch.randn(*s, dtype=torch.bfloat16) * 0.2)(H * Dh, D) * ((H * Dh) ** -0.5)),
        }
    _A_in = _A_setup()

    def _B_setup():
        B, S, D, F = 2, 1, 640, 1536
        return {
            "x": _w((lambda *s: torch.randn(*s, dtype=torch.bfloat16) * 0.05)(B, S, D)),
            "w_gate": _w((lambda *s: torch.randn(*s, dtype=torch.bfloat16) * 0.1)(D, F)),
            "w_up": _w((lambda *s: torch.randn(*s, dtype=torch.bfloat16) * 0.1)(D, F)),
            "w_down": _w((lambda *s: torch.randn(*s, dtype=torch.bfloat16) * 0.1)(F, D)),
        }
    _B_in = _B_setup()

    return {
        "A_x": _A_in["x"],
        "A_k_cache": _A_in["k_cache"],
        "A_v_cache": _A_in["v_cache"],
        "A_wq": _A_in["wq"],
        "A_wo": _A_in["wo"],
        "B_x": _B_in["x"],
        "B_w_gate": _B_in["w_gate"],
        "B_w_up": _B_in["w_up"],
        "B_w_down": _B_in["w_down"],
    }

def reference(A_x, A_k_cache, A_v_cache, A_wq, A_wo, B_x, B_w_gate, B_w_up, B_w_down):
    def _A_ref(x, k_cache, v_cache, wq, wo):
        B, Sq, D = x.shape
        H, Dh = 32, 192
        q = (lambda x, *d: x.permute(*d))((x @ wq).reshape(B, Sq, H, Dh), 0, 2, 1, 3)
        scores = torch.einsum("bhqd,bhkd->bhqk", q, k_cache) * (Dh ** -0.5)
        p = _softmax(scores, axis=-1)
        o = torch.einsum("bhqk,bhkd->bhqd", p, v_cache)
        return (lambda x, *d: x.permute(*d))(o, 0, 2, 1, 3).reshape(B, Sq, H * Dh) @ wo

    def _B_ref(x, w_gate, w_up, w_down):
        return (_gelu(x @ w_gate) * (x @ w_up)) @ w_down

    x = A_x
    xn = _layernorm(x, axis=-1)
    s = _A_ref(xn, A_k_cache, A_v_cache, A_wq, A_wo)
    g = _silu(_B_ref(xn, B_w_gate, B_w_up, B_w_down))
    return x + s * g
```

```python
NAME = "recurrent_scan__mha_block_cached__geglu_ffn__decode_kernel"
class Asm:
    def __init__(self):
        self.L = []
    def __call__(self, s):
        for line in s.split("\n"):
            self.L.append("  " + line.strip() if not line.strip().endswith(":") else line.strip())
    def raw(self, s): self.L.append(s)
    def header(self, grid, block, lds):
        self.raw(f"; @launch grid=({grid},1,1) block=({block},1,1) lds={lds}")
        self.raw('.amdgcn_target "amdgcn-amd-amdhsa--gfx950"')
        self.raw(".text"); self.raw(f".globl {NAME}"); self.raw(".p2align 8")
        self.raw(f".type {NAME},@function"); self.raw(f"{NAME}:")
    def footer(self, nv, ns=102):
        self.raw('.section .rodata,"a"'); self.raw(".p2align 6"); self.raw(f".amdhsa_kernel {NAME}")
        self.raw(f"  .amdhsa_next_free_vgpr {nv}"); self.raw(f"  .amdhsa_next_free_sgpr {ns}")
        self.raw(f"  .amdhsa_accum_offset {(nv+3)//4*4}")
        self.raw("  .amdhsa_group_segment_fixed_size 0"); self.raw("  .amdhsa_kernarg_size 96")
        self.raw("  .amdhsa_user_sgpr_count 2"); self.raw("  .amdhsa_user_sgpr_kernarg_segment_ptr 1")
        self.raw("  .amdhsa_system_sgpr_workgroup_id_x 1"); self.raw(".end_amdhsa_kernel")
    def text(self): return "\n".join(self.L) + "\n"
```

```python
import sys
from asmlib import Asm, NAME

class P:
    D = 2
    D0 = 4
    NS = 18
    STAMPS = False
    SPIN = 1 << 20
    NT = "nt"

XN = 0
QB = 2560
HB = 2944
OBF = 3200
FLAGS = 3968
MW = 4032
LW = 4096
RED = 4160
RED_STRIDE = 784
W1, WD, WO = 20480, 71680, 83968
FIN = 20480
FIN_STRIDE = 328 * 4
LDS_BYTES = 133120
P_BASE = 0
P_REC = 2304
H1_BASE = 0x100000
S_BASE = 0x180000
G_BASE = 0x1C0000
WS_BYTES = 0x200000
STAMP_BASE = 0x10000000

S_X, S_K, S_V, S_WQ, S_WO, S_BX, S_WG, S_WU = 4, 6, 8, 10, 12, 14, 16, 18
S_WDN, S_OUT, S_DBG, S_WS = 20, 22, 24, 26
sH, sJ, sW, sB = 28, 29, 30, 31
R_K, R_V, R_WQ, R_WG, R_WU, R_WDN, R_WO, R_WS, R_DBG, R_X, R_OUT = 32, 36, 40, 44, 48, 52, 56, 60, 64, 68, 72
sG0 = 76
sT0, sT1, sT2, sT3, sT4, sT5 = 84, 85, 86, 87, 88, 89
sEX = 90
sM8 = 92
sSP = 94
sCI = 95
sID = 96
sST = 98
def srd(r): return f"s[{r}:{r+3}]"

vTID, vKV, vL = 0, 1, 2
vA, vB_, vC, vD_ = 3, 4, 5, 6
vS7 = 7
SLOT0 = 8
vQ = 80
vSc = 92
vT = 125
vACC = 80
vP = 104
vLW = 120
vM2 = 121
vFW = 122
vX0 = 123
vSTAMP = 124

LOG2E = 0x3fb8aa3b
SCALE = 0x3d93cd3a

def gen():
    A = Asm()
    A.header(256, 1024, LDS_BYTES)
    nst = [0]
    def stamp(k):
        if not P.STAMPS: return
        A(f"s_memrealtime s[{sST}:{sST+1}]")
        A("s_waitcnt lgkmcnt(0)")
        A(f"v_writelane_b32 v{vSTAMP}, s{sST}, {2*k}")
        A(f"v_writelane_b32 v{vSTAMP}, s{sST+1}, {2*k+1}")
    def slot(n): return SLOT0 + 4 * (n % P.NS)
    def kv_issue(n):
        r = slot(n)
        if n < 24:
            G, i = divmod(n, 3); R = R_K
        else:
            G, i = divmod(n - 24, 3); R = R_V
        A(f"buffer_load_dwordx4 v[{r}:{r+3}], v{vKV}, {srd(R)}, s{sG0+G} offen offset:{i*128} {P.NT}")

    A(f"""s_cmp_ge_u32 s2, 256
    s_cbranch_scc1 L_end
    s_load_dwordx16 s[4:19], s[0:1], 0
    s_load_dwordx8 s[20:27], s[0:1], 64""")
    if P.STAMPS:
        A(f"v_mov_b32 v{vSTAMP}, 0")
    stamp(0)
    A(f"""v_lshrrev_b32 v{vA}, 6, v0
    v_and_b32 v{vL}, 63, v0
    s_and_b32 s{sT0}, s2, 7
    v_readfirstlane_b32 s{sW}, v{vA}
    s_lshr_b32 s{sT1}, s2, 3
    s_and_b32 s{sJ}, s{sT1}, 7
    s_lshr_b32 s{sT1}, s{sT1}, 3
    s_lshl_b32 s{sH}, s{sT0}, 2
    s_add_u32 s{sH}, s{sH}, s{sT1}
    s_lshr_b32 s{sB}, s{sJ}, 2
    s_lshl_b32 s{sID}, s{sH}, 3
    s_add_u32 s{sID}, s{sID}, s{sJ}
    v_lshrrev_b32 v{vB_}, 3, v{vL}
    v_and_b32 v{vC}, 7, v{vL}
    v_lshlrev_b32 v{vC}, 4, v{vC}
    v_mul_u32_u24 v{vKV}, 384, v{vB_}
    v_add_u32 v{vKV}, v{vKV}, v{vC}
    s_mul_i32 s{sT2}, s{sW}, 24576
    v_add_u32 v{vKV}, s{sT2}, v{vKV}
    """)
    for G in range(8): A(f"s_mov_b32 s{sG0+G}, {G*3072}")
    A(f"s_mov_b32 s{sM8}, 0xff00ff00"); A(f"s_mov_b32 s{sM8+1}, 0xff00ff00")
    A(f"""s_lshl_b32 s{sT0}, s{sB}, 5
    s_add_u32 s{sT0}, s{sT0}, s{sH}
    s_mul_i32 s{sT0}, s{sT0}, 1572864
    s_and_b32 s{sT1}, s{sJ}, 3
    s_mul_i32 s{sT1}, s{sT1}, 393216
    s_add_u32 s{sT0}, s{sT0}, s{sT1}
    s_and_b32 s{sCI}, s{sH}, 3
    s_lshl_b32 s{sCI}, s{sCI}, 4
    s_lshr_b32 s{sT1}, s{sH}, 2
    s_add_u32 s{sCI}, s{sCI}, s{sT1}
    s_lshl_b32 s{sCI}, s{sCI}, 2
    s_waitcnt lgkmcnt(0)""")
    def mk_srd(R, ptr, off_sgpr, size):
        if off_sgpr is None:
            A(f"s_mov_b32 s{R}, s{ptr}"); A(f"s_mov_b32 s{R+1}, s{ptr+1}")
        else:
            A(f"s_add_u32 s{R}, s{ptr}, s{off_sgpr}"); A(f"s_addc_u32 s{R+1}, s{ptr+1}, 0")
        A(f"s_mov_b32 s{R+2}, {size}"); A(f"s_mov_b32 s{R+3}, 0x20000")
    mk_srd(R_K, S_K, sT0, 393216)
    mk_srd(R_V, S_V, sT0, 393216)
    mk_srd(R_WS, S_WS, None, WS_BYTES)
    mk_srd(R_DBG, S_DBG, None, 256)
    mk_srd(R_X, S_X, None, 2560)
    mk_srd(R_OUT, S_OUT, None, 2560)
    A(f"s_mul_i32 s{sT0}, s{sJ}, {80*12288}"); A(f"s_mul_i32 s{sT1}, s{sH}, 384"); A(f"s_add_u32 s{sT0}, s{sT0}, s{sT1}")
    mk_srd(R_WQ, S_WQ, sT0, 79 * 12288 + 384)
    A(f"s_mul_i32 s{sT0}, s{sJ}, {80*3072}"); A(f"s_mul_i32 s{sT1}, s{sH}, 96"); A(f"s_add_u32 s{sT0}, s{sT0}, s{sT1}")
    mk_srd(R_WG, S_WG, sT0, 79 * 3072 + 96)
    mk_srd(R_WU, S_WU, sT0, 79 * 3072 + 96)
    A(f"s_mul_i32 s{sT0}, s{sH}, {48*1280}"); A(f"s_mul_i32 s{sT1}, s{sJ}, 160"); A(f"s_add_u32 s{sT0}, s{sT0}, s{sT1}")
    mk_srd(R_WDN, S_WDN, sT0, 47 * 1280 + 160)
    A(f"s_mul_i32 s{sT0}, s{sH}, {192*1280}"); A(f"s_add_u32 s{sT0}, s{sT0}, s{sT1}")
    mk_srd(R_WO, S_WO, sT0, 191 * 1280 + 160)

    A(f"s_cmp_ge_u32 s{sW}, 10")
    A("s_cbranch_scc1 L_role_hi")
    A(f"""v_mul_u32_u24 v{vA}, 12288, v{vB_}
    v_add_u32 v{vA}, v{vA}, v{vC}
    v_mul_u32_u24 v{vD_}, 3072, v{vB_}
    v_add_u32 v{vD_}, v{vD_}, v{vC}
    s_mul_i32 s{sT0}, s{sW}, 98304
    s_mul_i32 s{sT1}, s{sW}, 5120""")
    for i in range(3):
        A(f"s_add_u32 m0, s{sT1}, {W1 + i*1024}")
        A(f"s_add_u32 s{sT2}, s{sT0}, {i*128}")
        A(f"buffer_load_dwordx4 v{vA}, {srd(R_WQ)}, s{sT2} offen {P.NT} lds")
    A(f"""s_mul_i32 s{sT0}, s{sW}, 24576
    s_mov_b32 exec_lo, 0x3f3f3f3f
    s_mov_b32 exec_hi, 0x3f3f3f3f
    s_add_u32 m0, s{sT1}, {W1 + 3072}
    s_nop 0
    buffer_load_dwordx4 v{vD_}, {srd(R_WG)}, s{sT0} offen {P.NT} lds
    s_add_u32 m0, s{sT1}, {W1 + 4096}
    s_nop 0
    buffer_load_dwordx4 v{vD_}, {srd(R_WU)}, s{sT0} offen {P.NT} lds
    s_mov_b64 exec, -1
    s_branch L_role_done""")
    A("L_role_hi:")
    A(f"s_cmp_ge_u32 s{sW}, 12")
    A("s_cbranch_scc1 L_role_clr")
    A(f"""s_sub_u32 s{sT0}, s{sW}, 10
    s_mul_i32 s{sT0}, s{sT0}, 1280
    v_lshlrev_b32 v{vA}, 2, v{vL}""")
    for t in range(5):
        A(f"buffer_load_dword v{100+t}, v{vA}, {srd(R_X)}, s{sT0} offen offset:{t*256}")
    A("s_branch L_role_wd")
    A("L_role_clr:")
    A(f"""v_mov_b32 v100, -1
    v_mov_b32 v101, -1
    v_mov_b32 v102, -1
    v_mov_b32 v103, -1
    v_lshlrev_b32 v{vA}, 4, v{vL}
    s_cmp_eq_u32 s{sW}, 15
    s_cbranch_scc1 L_clr_lds
    s_lshl_b32 s{sT0}, s{sID}, 10
    s_add_u32 s{sT0}, s{sT0}, {H1_BASE}
    s_mov_b32 s{sT2}, 49
    s_cmp_eq_u32 s{sW}, 12
    s_cbranch_scc1 L_clr_go
    s_lshl_b32 s{sT0}, s{sJ}, 5
    s_add_u32 s{sT0}, s{sT0}, s{sH}
    s_mul_i32 s{sT0}, s{sT0}, 640
    s_mov_b32 s{sT2}, 40
    s_mov_b32 s{sT1}, {S_BASE}
    s_cmp_eq_u32 s{sW}, 13
    s_cselect_b32 s{sT1}, s{sT1}, {G_BASE}
    s_add_u32 s{sT0}, s{sT0}, s{sT1}
    L_clr_go:
    v_cmp_gt_u32 vcc, s{sT2}, v{vL}
    s_and_saveexec_b64 s[{sEX}:{sEX+1}], vcc
    buffer_store_dwordx4 v[100:103], v{vA}, {srd(R_WS)}, s{sT0} offen sc1
    s_mov_b64 exec, s[{sEX}:{sEX+1}]
    s_branch L_role_wd
    L_clr_lds:
    v_mov_b32 v100, 0
    v_lshlrev_b32 v{vA}, 2, v{vL}
    v_add_u32 v{vA}, {FLAGS}, v{vA}
    ds_write_b32 v{vA}, v100""")
    A("L_role_wd:")
    A(f"""v_lshrrev_b32 v{vA}, 4, v{vL}
    v_mul_u32_u24 v{vA}, 1280, v{vA}
    v_and_b32 v{vD_}, 15, v{vL}
    v_lshl_add_u32 v{vA}, v{vD_}, 4, v{vA}
    s_sub_u32 s{sT0}, s{sW}, 10
    s_lshl_b32 s{sT1}, s{sT0}, 11
    s_mul_i32 s{sT0}, s{sT0}, {8*1280}
    s_mov_b32 exec_lo, 0x03ff03ff
    s_mov_b32 exec_hi, 0x03ff03ff""")
    for u in range(2):
        A(f"s_add_u32 m0, s{sT1}, {WD + u*1024}")
        A(f"s_add_u32 s{sT2}, s{sT0}, {u*4*1280}")
        A(f"buffer_load_dwordx4 v{vA}, {srd(R_WDN)}, s{sT2} offen {P.NT} lds")
    A("s_mov_b64 exec, -1")
    A("L_role_done:")
    N0 = 2
    for n in range(N0): kv_issue(n)
    A(f"s_sub_u32 s{sT0}, s{sW}, 10")
    A(f"s_cmp_lt_u32 s{sT0}, 2")
    A("s_cbranch_scc0 L_noln")
    A(f"s_waitcnt vmcnt({2 + N0})")
    for t in range(5):
        A(f"v_lshlrev_b32 v{105+2*t}, 16, v{100+t}")
        A(f"v_and_b32 v{106+2*t}, 0xffff0000, v{100+t}")
    def wave_sum(r, tmp):
        A("s_nop 1")
        A(f"v_add_f32_dpp v{r}, v{r}, v{r} quad_perm:[1,0,3,2] row_mask:0xf bank_mask:0xf")
        A("s_nop 1")
        A(f"v_add_f32_dpp v{r}, v{r}, v{r} quad_perm:[2,3,0,1] row_mask:0xf bank_mask:0xf")
        A("s_nop 1")
        A(f"v_add_f32_dpp v{r}, v{r}, v{r} row_half_mirror row_mask:0xf bank_mask:0xf")
        row_hi_reduce(r, tmp, "add")
    def row_hi_reduce(r, tmp, op):
        A("s_nop 1")
        A(f"v_{op}_f32_dpp v{r}, v{r}, v{r} row_ror:8 row_mask:0xf bank_mask:0xf")
        A(f"v_mov_b32 v{tmp}, v{r}")
        A("s_nop 1")
        A(f"v_permlane16_swap_b32 v{r}, v{tmp}")
        A(f"v_{op}_f32 v{r}, v{r}, v{tmp}")
        A(f"v_mov_b32 v{tmp}, v{r}")
        A("s_nop 1")
        A(f"v_permlane32_swap_b32 v{r}, v{tmp}")
        A(f"v_{op}_f32 v{r}, v{r}, v{tmp}")
    def round_bf16(r, tmp=None):
        A(f"v_cvt_pk_bf16_f32 v{r}, v{r}, v{r}")
        A(f"v_and_b32 v{r}, 0xffff0000, v{r}")
    A("v_add_f32 v115, v105, v106")
    for t in range(107, 115): A(f"v_add_f32 v115, v115, v{t}")
    wave_sum(115, 116)
    A("v_mul_f32 v115, 0x3acccccd, v115")
    A("v_mov_b32 v117, 0")
    for t in range(105, 115):
        A(f"v_sub_f32 v116, v{t}, v115")
        A(f"v_fmac_f32 v117, v116, v116")
    wave_sum(117, 116)
    A("v_mul_f32 v117, 0x3acccccd, v117")
    round_bf16(117)
    A("v_add_f32 v117, 0x3727c5ac, v117")
    round_bf16(117)
    A("v_sqrt_f32 v117, v117")
    A("s_nop 0")
    round_bf16(117)
    A("v_rcp_f32 v118, v117")
    round_bf16(115)
    for t in range(105, 115):
        A(f"v_sub_f32 v{t}, v{t}, v115")
    for t in range(105, 115, 2):
        A(f"v_cvt_pk_bf16_f32 v116, v{t}, v{t+1}")
        A(f"v_lshlrev_b32 v{t}, 16, v116")
        A(f"v_and_b32 v{t+1}, 0xffff0000, v116")
    for t in range(105, 115):
        A(f"v_mul_f32 v116, v{t}, v118")
        A(f"v_fma_f32 v119, -v116, v117, v{t}")
        A(f"v_fma_f32 v{t}, v119, v118, v116")
    A(f"v_lshlrev_b32 v{vA}, 2, v{vL}")
    A(f"s_mul_i32 s{sT0}, s{sT0}, 1280")
    A(f"s_add_u32 s{sT0}, s{sT0}, {XN}")
    A(f"v_add_u32 v{vA}, s{sT0}, v{vA}")
    for t in range(5):
        A(f"v_cvt_pk_bf16_f32 v116, v{105+2*t}, v{106+2*t}")
        A(f"ds_write_b32 v{vA}, v116 offset:{t*256}")
    A("L_noln:")
    A(f"s_waitcnt vmcnt({N0}) lgkmcnt(0)")
    A("s_barrier")
    stamp(1)
    kv_issue(2); kv_issue(3)
    A(f"s_cmp_ge_u32 s{sW}, 9")
    A("s_cbranch_scc1 L_stream")
    vg, vq, ve = 100, 101, 102
    A(f"""v_lshrrev_b32 v{vg}, 4, v{vL}
    v_bfe_u32 v{vq}, v{vL}, 2, 2
    v_and_b32 v{ve}, 3, v{vL}
    v_lshlrev_b32 v{ve}, 3, v{ve}
    v_lshl_add_u32 v{ve}, v{vq}, 7, v{ve}          ; q*128 + e*8
    v_mul_u32_u24 v103, 5120, v{vg}
    v_add_u32 v103, v103, v{ve}
    v_lshrrev_b32 v104, 1, v{vg}
    v_add_u32 v104, 8, v104
    v_mul_u32_u24 v104, 5120, v104
    v_and_b32 v105, 1, v{vg}
    v_lshl_add_u32 v104, v105, 9, v104
    v_add_u32 v104, v104, v{ve}                    ; vb16
    v_and_b32 v105, 1, v{vq}
    v_mul_u32_u24 v105, 1280, v105
    s_mul_i32 s{sT0}, s{sJ}, 160
    s_add_u32 s{sT0}, s{sT0}, {XN}
    v_add_u32 v105, s{sT0}, v105
    v_lshl_add_u32 v106, v{vg}, 4, v105
    v_lshl_add_u32 v107, v{vg}, 3, v105
    ds_read_b128 v[32:35], v106
    ds_read_b128 v[36:39], v106 offset:64
    ds_read_b64 v[40:41], v107 offset:128""")
    for tt in range(2):
        sT = sT1 + tt
        A(f"s_lshl_b32 s{sT3}, s{sW}, 1")
        if tt: A(f"s_add_u32 s{sT3}, s{sT3}, 1")
        A(f"""s_lshr_b32 s{sT4}, s{sT3}, 2
        s_lshl_b32 s{sT4}, s{sT4}, 10
        s_and_b32 s{sT5}, s{sT3}, 3
        s_lshl_b32 s{sT5}, s{sT5}, 5
        s_add_u32 s{sT}, s{sT4}, s{sT5}
        s_cmp_lt_u32 s{sT3}, 12
        s_cbranch_scc1 L_toff{tt}
        s_sub_u32 s{sT4}, s{sT3}, 12
        s_lshl_b32 s{sT4}, s{sT4}, 5
        s_add_u32 s{sT}, s{sT4}, 3072
        s_cmp_lt_u32 s{sT3}, 15
        s_cbranch_scc1 L_toff{tt}
        s_sub_u32 s{sT4}, s{sT3}, 15
        s_lshl_b32 s{sT4}, s{sT4}, 5
        s_add_u32 s{sT}, s{sT4}, 4096
        L_toff{tt}:""")
        b0 = 44 + tt * 12
        A(f"v_add_u32 v108, s{sT}, v103")
        A(f"v_add_u32 v109, s{sT}, v104")
        A(f"ds_read_b64_tr_b16 v[{b0}:{b0+1}], v108 offset:{W1}")
        A(f"ds_read_b64_tr_b16 v[{b0+2}:{b0+3}], v108 offset:{W1+512}")
        A(f"ds_read_b64_tr_b16 v[{b0+4}:{b0+5}], v108 offset:{W1+20480}")
        A(f"ds_read_b64_tr_b16 v[{b0+6}:{b0+7}], v108 offset:{W1+20480+512}")
        A(f"ds_read_b64_tr_b16 v[{b0+8}:{b0+9}], v109 offset:{W1}")
    A("s_waitcnt lgkmcnt(0)")
    for tt in range(2):
        b0 = 44 + tt * 12; d0 = 68 + tt * 4
        A(f"v_mfma_f32_16x16x32_bf16 v[{d0}:{d0+3}], v[32:35], v[{b0}:{b0+3}], 0")
    for tt in range(2):
        b0 = 44 + tt * 12; d0 = 68 + tt * 4
        A(f"v_mfma_f32_16x16x32_bf16 v[{d0}:{d0+3}], v[36:39], v[{b0+4}:{b0+7}], v[{d0}:{d0+3}]")
    for tt in range(2):
        b0 = 44 + tt * 12; d0 = 68 + tt * 4
        A(f"v_mfma_f32_16x16x16_bf16 v[{d0}:{d0+3}], v[40:41], v[{b0+8}:{b0+9}], v[{d0}:{d0+3}]")
    A(f"""v_and_b32 v105, 15, v{vL}
    v_mul_u32_u24 v106, 1152, v{vg}
    v_lshl_add_u32 v107, v105, 2, v106            ; q-form: b*1152 + n*4
    v_lshrrev_b32 v108, 1, v105
    v_lshl_add_u32 v106, v108, 4, v106
    v_and_b32 v108, 1, v105
    v_lshl_add_u32 v106, v108, 2, v106            ; f-form: b*1152 + (n>>1)*16 + (n&1)*4
    s_mul_i32 s{sT0}, s{sID}, {P_REC}""")
    for tt in range(2):
        A(f"s_lshl_b32 s{sT3}, s{sW}, 1")
        if tt: A(f"s_add_u32 s{sT3}, s{sT3}, 1")
        A(f"""s_lshl_b32 s{sT1+tt}, s{sT3}, 6
        s_cmp_lt_u32 s{sT3}, 12
        s_cbranch_scc1 L_sb{tt}
        s_sub_u32 s{sT4}, s{sT3}, 12
        s_lshl_b32 s{sT4}, s{sT4}, 7
        s_add_u32 s{sT1+tt}, s{sT4}, 768
        s_cmp_lt_u32 s{sT3}, 15
        s_cbranch_scc1 L_sb{tt}
        s_sub_u32 s{sT4}, s{sT3}, 15
        s_lshl_b32 s{sT4}, s{sT4}, 7
        s_add_u32 s{sT1+tt}, s{sT4}, 776
        L_sb{tt}:
        s_add_u32 s{sT1+tt}, s{sT1+tt}, s{sT0}""")
    A(f"""s_cmp_ge_u32 s{sW}, 6
    s_cbranch_scc0 L_qform
    v_mov_b32 v107, v106
    L_qform:
    s_mov_b32 exec_lo, -1
    s_mov_b32 exec_hi, 0
    s_nop 4
    buffer_store_dword v68, v107, {srd(R_WS)}, s{sT1} offen sc1
    buffer_store_dword v72, v107, {srd(R_WS)}, s{sT2} offen sc1
    s_mov_b64 exec, -1
    s_waitcnt vmcnt(0)
    v_mov_b32 v105, {FLAGS+4}
    v_mov_b32 v106, 1
    s_mov_b64 exec, 1
    ds_add_rtn_u32 v107, v105, v106
    s_waitcnt lgkmcnt(0)
    v_readfirstlane_b32 s{sT0}, v107
    s_cmp_eq_u32 s{sT0}, 8
    s_cbranch_scc0 L_notlast
    buffer_atomic_add v106, off, {srd(R_DBG)}, s{sCI}
    L_notlast:
    s_mov_b64 exec, -1""")
    stamp(2)
    A(f"s_cmp_eq_u32 s{sW}, 0")
    A("s_cbranch_scc1 L_control")

    def consume_k(G):
        acc = vSc + G
        A(f"v_mov_b32 v{acc}, 0")
        for i in range(3):
            r = slot(3 * G + i)
            for t in range(4):
                A(f"v_dot2c_f32_bf16 v{acc}, v{r+t}, v{vQ+4*i+t}")
        A("s_nop 2")
        A(f"v_add_f32_dpp v{acc}, v{acc}, v{acc} quad_perm:[1,0,3,2] row_mask:0xf bank_mask:0xf")
        A("s_nop 1")
        A(f"v_add_f32_dpp v{acc}, v{acc}, v{acc} quad_perm:[2,3,0,1] row_mask:0xf bank_mask:0xf")
        A("s_nop 1")
        A(f"v_add_f32_dpp v{acc}, v{acc}, v{acc} row_half_mirror row_mask:0xf bank_mask:0xf")
    def round8(tmp):
        for k in range(4):
            a, b = vSc + 2 * k, vSc + 2 * k + 1
            A(f"v_cvt_pk_bf16_f32 v{tmp}, v{a}, v{b}")
            A(f"v_lshlrev_b32 v{a}, 16, v{tmp}")
            A(f"v_and_b32 v{b}, 0xffff0000, v{tmp}")
    def softmax(tag):
        A("s_nop 1")
        round8(vT)
        for k in range(8): A(f"v_mul_f32 v{vSc+k}, {hex(SCALE)}, v{vSc+k}")
        round8(vT)
        A(f"v_max3_f32 v{vM2}, v{vSc}, v{vSc+1}, v{vSc+2}")
        A(f"v_max3_f32 v{vM2}, v{vM2}, v{vSc+3}, v{vSc+4}")
        A(f"v_max3_f32 v{vM2}, v{vM2}, v{vSc+5}, v{vSc+6}")
        A(f"v_max_f32 v{vM2}, v{vM2}, v{vSc+7}")
        row_hi_reduce(vM2, vT, "max")
        A(f"v_mul_f32 v{vM2}, {hex(LOG2E)}, v{vM2}")
        A(f"s_mov_b32 s{sT0}, {hex(LOG2E)}")
        for k in range(8): A(f"v_fma_f32 v{vSc+k}, v{vSc+k}, s{sT0}, -v{vM2}")
        for k in range(8): A(f"v_exp_f32 v{vSc+k}, v{vSc+k}")
        A("s_nop 0")
        A(f"v_add_f32 v{vLW}, v{vSc}, v{vSc+1}")
        for k in range(2, 8): A(f"v_add_f32 v{vLW}, v{vLW}, v{vSc+k}")
        for k in range(4):
            a, b = vSc + 2 * k, vSc + 2 * k + 1
            A(f"v_cvt_pk_bf16_f32 v{vT}, v{a}, v{b}")
            A(f"v_and_b32 v{vP+4*k}, 0xffff, v{vT}")
            A(f"v_lshlrev_b32 v{vP+4*k+1}, 16, v{vT}")
            A(f"v_lshrrev_b32 v{vP+4*k+2}, 16, v{vT}")
            A(f"v_and_b32 v{vP+4*k+3}, 0xffff0000, v{vT}")
        row_hi_reduce(vLW, vT, "add")
        A(f"s_lshl_b32 s{sT0}, s{sW}, 2")
        A(f"s_add_u32 s{sT0}, s{sT0}, {MW}")
        A(f"v_mov_b32 v{vT}, s{sT0}")
        A(f"v_mov_b32 v{vT+1}, {FLAGS+8}")
        A(f"v_mov_b32 v{vT+2}, 1")
        A("s_mov_b64 exec, 1")
        A(f"ds_write_b32 v{vT}, v{vM2}")
        A(f"ds_add_u32 v{vT+1}, v{vT+2}")
        A("s_mov_b64 exec, -1")
        for k in range(24): A(f"v_mov_b32 v{vACC+k}, 0")
    def consume_v(n):
        G, i = divmod(n - 24, 3)
        r = slot(n)
        for t in range(4):
            A(f"v_dot2c_f32_bf16 v{vACC+8*i+2*t}, v{r+t}, v{vP+2*G}")
            A(f"v_dot2c_f32_bf16 v{vACC+8*i+2*t+1}, v{r+t}, v{vP+2*G+1}")
    def read_q():
        A(f"v_and_b32 v{vT}, 7, v{vL}")
        A(f"v_lshlrev_b32 v{vT}, 4, v{vT}")
        A(f"v_add_u32 v{vT}, {QB}, v{vT}")
        for i in range(3):
            A(f"ds_read_b128 v[{vQ+4*i}:{vQ+4*i+3}], v{vT} offset:{i*128}")
        A("s_waitcnt lgkmcnt(0)")
    def wo_dma():
        A(f"""v_lshrrev_b32 v{vT}, 4, v{vL}
        v_mul_u32_u24 v{vT}, 1280, v{vT}
        v_and_b32 v{vT+1}, 15, v{vL}
        v_lshl_add_u32 v{vT}, v{vT+1}, 4, v{vT}
        s_mul_i32 s{sT0}, s{sW}, {12*1280}
        s_mul_i32 s{sT1}, s{sW}, 3072
        s_mov_b32 exec_lo, 0x03ff03ff
        s_mov_b32 exec_hi, 0x03ff03ff""")
        for u in range(3):
            A(f"s_add_u32 m0, s{sT1}, {WO + u*1024}")
            A(f"s_add_u32 s{sT2}, s{sT0}, {u*4*1280}")
            A(f"buffer_load_dwordx4 v{vT}, {srd(R_WO)}, s{sT2} offen {P.NT} lds")
        A("s_mov_b64 exec, -1")
    def stream(D, issued, tag, waitq):
        NS = P.NS
        n = issued
        while n < NS:
            A(f"s_waitcnt vmcnt({D-1})")
            kv_issue(n); n += 1
        if waitq:
            A(f"v_mov_b32 v{vT}, {FLAGS}")
            A(f"L_wq_{tag}:")
            A(f"ds_read_b32 v{vT+1}, v{vT}")
            A("s_waitcnt lgkmcnt(0)")
            A(f"v_readfirstlane_b32 s{sT0}, v{vT+1}")
            A(f"s_cmp_lg_u32 s{sT0}, 0")
            A(f"s_cbranch_scc1 L_gotq_{tag}")
            A("s_sleep 2")
            A(f"s_branch L_wq_{tag}")
            A(f"L_gotq_{tag}:")
        read_q()
        stamp(3)
        arrived = NS - D
        consumed = 0
        sm_done = False
        def consume_upto(lim):
            nonlocal consumed, sm_done
            while True:
                if consumed < 24:
                    if consumed + 3 <= lim:
                        consume_k(consumed // 3); consumed += 3
                        if consumed == 24:
                            softmax(tag); sm_done = True; stamp(4)
                    else: break
                else:
                    if consumed < lim:
                        consume_v(consumed); consumed += 1
                    else: break
        while n < 48:
            need = n - NS + 1
            if consumed < need:
                assert arrived >= need, (arrived, need)
                lim = need if need > 24 else ((need + 2) // 3) * 3
                assert arrived >= lim
                consume_upto(lim)
            A(f"s_waitcnt vmcnt({D-1})")
            arrived = max(arrived, n - D + 1)
            kv_issue(n); n += 1
            consume_upto(arrived)
        wo_dma()
        A(f"v_mov_b32 v{vT}, {FLAGS+8}")
        A(f"L_wm_{tag}:")
        A(f"ds_read_b32 v{vT+1}, v{vT}")
        A("s_waitcnt lgkmcnt(0)")
        A(f"v_readfirstlane_b32 s{sT0}, v{vT+1}")
        A(f"s_cmp_ge_u32 s{sT0}, 16")
        A(f"s_cbranch_scc1 L_gotm_{tag}")
        A("s_sleep 1")
        A(f"s_branch L_wm_{tag}")
        A(f"L_gotm_{tag}:")
        A(f"v_and_b32 v{vT}, 15, v{vL}")
        A(f"v_lshlrev_b32 v{vT}, 2, v{vT}")
        A(f"v_add_u32 v{vT}, {MW}, v{vT}")
        A(f"ds_read_b32 v{vFW}, v{vT}")
        A("s_waitcnt lgkmcnt(0)")
        for sh in (8, 4, 2, 1):
            A("s_nop 1")
            A(f"v_max_f32_dpp v{vFW}, v{vFW}, v{vFW} row_ror:{sh} row_mask:0xf bank_mask:0xf")
        A(f"v_sub_f32 v{vT}, v{vM2}, v{vFW}")
        A(f"v_mov_b32 v{vM2}, v{vFW}")
        A(f"v_exp_f32 v{vFW}, v{vT}")
        A("s_nop 0")
        A(f"v_mul_f32 v{vLW}, v{vLW}, v{vFW}")
        for k in range(arrived, 48):
            A(f"s_waitcnt vmcnt({47 - k + 3})")
            consume_upto(k + 1)
        stamp(5)
        A("s_branch L_tail")

    A("L_stream:")
    stream(P.D, 4, "a", True)

    A("L_control:")
    A(f"s_mov_b32 s{sSP}, {P.SPIN}")
    A("L_poll1:")
    A(f"""buffer_load_dword v32, off, {srd(R_DBG)}, s{sCI} sc1
    s_waitcnt vmcnt(0)
    v_readfirstlane_b32 s{sT0}, v32
    s_cmp_ge_u32 s{sT0}, 8
    s_cbranch_scc1 L_poll1_ok
    s_sleep 4
    s_sub_u32 s{sSP}, s{sSP}, 1
    s_cmp_lg_u32 s{sSP}, 0
    s_cbranch_scc1 L_poll1
    L_poll1_ok:""")
    stamp(6)
    A(f"""s_mov_b32 exec_lo, -1
    s_mov_b32 exec_hi, 0xffff
    v_lshlrev_b32 v100, 4, v{vL}
    v_cmp_le_u32 vcc, 24, v{vL}
    v_mov_b32 v101, 768
    v_mov_b32 v102, {768 + 1152 - 384}
    v_cndmask_b32 v101, v101, v102, vcc
    v_add_u32 v101, v101, v100
    s_lshl_b32 s{sT0}, s{sH}, 3
    s_mul_i32 s{sT0}, s{sT0}, {P_REC}
    s_mul_i32 s{sT1}, s{sB}, 1152
    s_add_u32 s{sT1}, s{sT1}, s{sT0}""")
    for jj in range(8):
        A(f"buffer_load_dwordx4 v[{32+4*jj}:{35+4*jj}], v100, {srd(R_WS)}, s{sT1} offen sc1")
        if jj < 7: A(f"s_add_u32 s{sT1}, s{sT1}, {P_REC}")
    for jj in range(8):
        A(f"buffer_load_dwordx4 v[{64+4*jj}:{67+4*jj}], v101, {srd(R_WS)}, s{sT0} offen sc1")
        if jj < 7: A(f"s_add_u32 s{sT0}, s{sT0}, {P_REC}")
    A("s_waitcnt vmcnt(8)")
    for jj in range(1, 8):
        for c in range(4): A(f"v_add_f32 v{32+c}, v{32+c}, v{32+4*jj+c}")
    A("""v_cvt_pk_bf16_f32 v36, v32, v33
    v_cvt_pk_bf16_f32 v37, v34, v35""")
    A(f"v_lshlrev_b32 v102, 3, v{vL}")
    A(f"v_add_u32 v102, {QB}, v102")
    A("ds_write_b64 v102, v[36:37]")
    A(f"v_mov_b32 v103, {FLAGS}")
    A("v_mov_b32 v104, 1")
    A("ds_write_b32 v103, v104")
    stamp(7)
    A("s_waitcnt vmcnt(0)")
    for jj in range(1, 8):
        for c in range(4): A(f"v_add_f32 v{64+c}, v{64+c}, v{64+4*jj+c}")
    A("""v_cvt_pk_bf16_f32 v68, v64, v65
    v_cvt_pk_bf16_f32 v69, v66, v67
    v_lshlrev_b32 v64, 16, v68
    v_and_b32 v65, 0xffff0000, v68
    v_lshlrev_b32 v66, 16, v69
    v_and_b32 v67, 0xffff0000, v69""")
    import struct, math
    def f2h(x): return hex(struct.unpack("<I", struct.pack("<f", x))[0])
    c1 = -2 * math.sqrt(2 / math.pi) * math.log2(math.e)
    c2 = c1 * 0.044715
    A(f"s_mov_b32 s{sT0}, {f2h(c2)}")
    A(f"v_mov_b32 v72, {f2h(c1)}")
    for k in range(2):
        x = 64 + k
        A(f"v_mul_f32 v70, v{x}, v{x}")
        A(f"v_fma_f32 v70, v70, s{sT0}, v72")
        A(f"v_mul_f32 v70, v70, v{x}")
        A(f"v_exp_f32 v70, v70")
        A("s_nop 0")
        A(f"v_add_f32 v70, 1.0, v70")
        A(f"v_rcp_f32 v71, v70")
        A("s_nop 0")
        A(f"v_mul_f32 v{x}, v{x}, v71")
    A("""v_cvt_pk_bf16_f32 v68, v64, v65
    v_lshlrev_b32 v64, 16, v68
    v_and_b32 v65, 0xffff0000, v68
    v_mul_f32 v64, v64, v66
    v_mul_f32 v65, v65, v67
    v_cvt_pk_bf16_f32 v68, v64, v65""")
    A(f"v_lshlrev_b32 v102, 2, v{vL}")
    A(f"v_add_u32 v102, {HB}, v102")
    A("ds_write_b32 v102, v68")
    A("s_mov_b64 exec, -1")
    A(f"""v_lshrrev_b32 v100, 4, v{vL}
    v_bfe_u32 v101, v{vL}, 2, 2
    v_and_b32 v102, 3, v{vL}
    v_lshlrev_b32 v102, 3, v102
    v_lshl_add_u32 v102, v101, 8, v102          ; q*256 + e*8
    v_lshl_add_u32 v103, v100, 11, v102         ; + g*8*256
    v_lshl_add_u32 v104, v100, 10, v102         ; + g*4*256
    v_add_u32 v103, {WD}, v103
    v_add_u32 v104, {WD}, v104
    v_and_b32 v105, 1, v101
    v_mul_u32_u24 v105, 96, v105
    v_add_u32 v105, {HB}, v105
    v_lshl_add_u32 v106, v100, 4, v105
    v_lshl_add_u32 v107, v100, 3, v105
    s_waitcnt lgkmcnt(0)
    ds_read_b128 v[32:35], v106
    ds_read_b64 v[36:37], v107 offset:64""")
    for ct in range(5):
        b0 = 40 + 6 * ct
        A(f"ds_read_b64_tr_b16 v[{b0}:{b0+1}], v103 offset:{ct*32}")
        A(f"ds_read_b64_tr_b16 v[{b0+2}:{b0+3}], v103 offset:{ct*32 + 1024}")
        A(f"ds_read_b64_tr_b16 v[{b0+4}:{b0+5}], v104 offset:{ct*32 + 32*256}")
    A("s_waitcnt lgkmcnt(0)")
    for ct in range(5):
        b0 = 40 + 6 * ct; d0 = 72 + 4 * ct
        A(f"v_mfma_f32_16x16x32_bf16 v[{d0}:{d0+3}], v[32:35], v[{b0}:{b0+3}], 0")
    for ct in range(5):
        b0 = 40 + 6 * ct; d0 = 72 + 4 * ct
        A(f"v_mfma_f32_16x16x16_bf16 v[{d0}:{d0+3}], v[36:37], v[{b0+4}:{b0+5}], v[{d0}:{d0+3}]")
    A(f"""v_and_b32 v105, 15, v{vL}
    v_mul_u32_u24 v106, 320, v100
    v_lshl_add_u32 v106, v105, 2, v106
    s_lshl_b32 s{sT0}, s{sJ}, 5
    s_add_u32 s{sT0}, s{sT0}, s{sH}
    s_mul_i32 s{sT0}, s{sT0}, 640
    s_add_u32 s{sT0}, s{sT0}, {G_BASE}
    s_mov_b32 exec_lo, -1
    s_mov_b32 exec_hi, 0
    s_nop 4""")
    for ct in range(5):
        A(f"buffer_store_dword v{72+4*ct}, v106, {srd(R_WS)}, s{sT0} offen offset:{ct*64} sc1")
    A("s_mov_b64 exec, -1")
    A(f"s_cmp_eq_u32 s{sH}, 0")
    A("s_cbranch_scc0 L_nofinchk")
    A(f"s_mov_b32 s{sSP}, {P.SPIN}")
    A(f"v_lshlrev_b32 v100, 2, v{vL}")
    A(f"v_and_b32 v101, 15, v{vL}")
    A("L_poll2:")
    A(f"""buffer_load_dword v102, v100, {srd(R_DBG)}, 0 offen sc1
    s_waitcnt vmcnt(0)
    v_cmp_gt_u32 vcc, 8, v102
    v_cmp_gt_u32 s[{sT0}:{sT0+1}], 8, v101
    s_nop 1
    s_and_b64 vcc, vcc, s[{sT0}:{sT0+1}]
    s_cbranch_vccz L_nofinchk
    s_sleep 8
    s_sub_u32 s{sSP}, s{sSP}, 1
    s_cmp_lg_u32 s{sSP}, 0
    s_cbranch_scc1 L_poll2
    L_nofinchk:""")
    A("s_waitcnt vmcnt(0)")
    stamp(8)
    stream(P.D0, 4, "c", False)

    A("L_tail:")
    A("s_nop 2")
    for i in range(3):
        for e in range(4): A(f"v_permlane32_swap_b32 v{vACC+8*i+e}, v{vACC+8*i+e+4}")
    for i in range(3):
        for e in range(4): A(f"v_add_f32 v{vACC+8*i+e}, v{vACC+8*i+e}, v{vACC+8*i+e+4}")
    for i in range(3):
        for e in range(2): A(f"v_permlane16_swap_b32 v{vACC+8*i+e}, v{vACC+8*i+e+2}")
    for i in range(3):
        for e in range(2): A(f"v_add_f32 v{vACC+8*i+e}, v{vACC+8*i+e}, v{vACC+8*i+e+2}")
    for i in range(3):
        X, Y = vACC + 8 * i, vACC + 8 * i + 1
        A(f"v_cndmask_b32 v{vACC+8*i+2}, v{X}, v{Y}, s[{sM8}:{sM8+1}]")
        A(f"v_cndmask_b32 v{vACC+8*i+3}, v{Y}, v{X}, s[{sM8}:{sM8+1}]")
    A("s_nop 1")
    for i in range(3):
        A(f"v_add_f32_dpp v{vACC+8*i}, v{vACC+8*i+3}, v{vACC+8*i+2} row_ror:8 row_mask:0xf bank_mask:0xf")
    A(f"""v_and_b32 v{vT}, 7, v{vL}
    v_lshlrev_b32 v{vT}, 5, v{vT}
    v_lshrrev_b32 v{vT+1}, 3, v{vL}
    v_lshl_add_u32 v{vT}, v{vT+1}, 2, v{vT}
    s_mul_i32 s{sT0}, s{sW}, {RED_STRIDE}
    s_add_u32 s{sT0}, s{sT0}, {RED}
    v_add_u32 v{vT}, s{sT0}, v{vT}""")
    for i in range(3):
        A(f"v_mul_f32 v{vACC+8*i}, v{vACC+8*i}, v{vFW}")
        A(f"ds_write_b32 v{vT}, v{vACC+8*i} offset:{i*256}")
    A(f"""s_lshl_b32 s{sT0}, s{sW}, 2
    s_add_u32 s{sT0}, s{sT0}, {LW}
    v_mov_b32 v{vT+1}, s{sT0}
    s_mov_b64 exec, 1
    ds_write_b32 v{vT+1}, v{vLW}
    s_mov_b64 exec, -1
    s_waitcnt lgkmcnt(0)
    s_barrier""")
    stamp(9)
    A(f"s_lshl_b32 s{sT1}, s{sID}, 10")
    A(f"s_add_u32 s{sT1}, s{sT1}, {H1_BASE}")
    A(f"s_cmp_ge_u32 s{sW}, 12")
    A("s_cbranch_scc1 L_ml")
    A(f"""v_and_b32 v32, 15, v{vL}
    v_mul_u32_u24 v32, {RED_STRIDE}, v32
    v_lshrrev_b32 v33, 4, v{vL}
    s_lshl_b32 s{sT0}, s{sW}, 2
    v_add_u32 v33, s{sT0}, v33
    v_lshlrev_b32 v33, 4, v33
    v_add_u32 v32, v32, v33
    ds_read_b128 v[36:39], v32 offset:{RED}
    s_waitcnt lgkmcnt(0)""")
    for sh in (8, 4, 2, 1):
        A("s_nop 0")
        for c in range(4):
            A(f"v_add_f32_dpp v{36+c}, v{36+c}, v{36+c} row_ror:{sh} row_mask:0xf bank_mask:0xf")
    A(f"""s_mov_b32 exec_lo, 0x00010001
    s_mov_b32 exec_hi, 0x00010001
    buffer_store_dwordx4 v[36:39], v33, {srd(R_WS)}, s{sT1} offen sc1
    s_mov_b64 exec, -1
    s_branch L_h1
    L_ml:
    s_cmp_eq_u32 s{sW}, 12
    s_cbranch_scc0 L_h1
    v_and_b32 v32, 15, v{vL}
    v_lshlrev_b32 v32, 2, v32
    ds_read_b32 v37, v32 offset:{LW}
    s_waitcnt lgkmcnt(0)""")
    for sh in (8, 4, 2, 1):
        A("s_nop 1")
        A(f"v_add_f32_dpp v37, v37, v37 row_ror:{sh} row_mask:0xf bank_mask:0xf")
    A(f"""v_mov_b32 v36, v{vM2}
    v_mov_b32 v38, 0
    v_mov_b32 v39, 0
    v_mov_b32 v33, 768
    s_mov_b64 exec, 1
    buffer_store_dwordx4 v[36:39], v33, {srd(R_WS)}, s{sT1} offen sc1
    s_mov_b64 exec, -1
    L_h1:""")
    stamp(10)
    A(f"s_cmp_ge_u32 s{sW}, 2")
    A("s_cbranch_scc1 L_h1_done")
    A(f"""s_lshl_b32 s{sT0}, s{sH}, 3
    s_lshl_b32 s{sT1}, s{sW}, 2
    s_add_u32 s{sT0}, s{sT0}, s{sT1}
    s_lshl_b32 s{sT0}, s{sT0}, 10
    s_add_u32 s{sT0}, s{sT0}, {H1_BASE}
    s_add_u32 s{sT1}, s{sT0}, 1024
    s_add_u32 s{sT2}, s{sT0}, 2048
    s_add_u32 s{sT3}, s{sT0}, 3072
    v_lshlrev_b32 v32, 4, v{vL}
    s_mov_b32 exec_lo, -1
    s_mov_b32 exec_hi, 0xffff
    s_mov_b32 s{sSP}, {P.SPIN}
    L_poll3:""")
    for s_ in range(4):
        A(f"buffer_load_dwordx4 v[{36+4*s_}:{39+4*s_}], v32, {srd(R_WS)}, s{sT0+s_} offen sc1")
        A(f"buffer_load_dwordx2 v[{52+2*s_}:{53+2*s_}], off, {srd(R_WS)}, s{sT0+s_} offset:768 sc1")
    A("s_waitcnt vmcnt(0)")
    A("v_max3_u32 v60, v36, v37, v38")
    for k in range(39, 59, 2): A(f"v_max3_u32 v60, v60, v{k}, v{k+1}")
    A("v_max_u32 v60, v60, v59")
    A(f"""v_cmp_eq_u32 vcc, -1, v60
    s_cbranch_vccz L_poll3_ok
    s_sub_u32 s{sSP}, s{sSP}, 1
    s_cmp_lg_u32 s{sSP}, 0
    s_cbranch_scc1 L_poll3
    L_poll3_ok:""")
    stamp(11)
    A("""v_max3_f32 v60, v52, v54, v56
    v_max_f32 v60, v60, v58""")
    for s_ in range(4): A(f"v_sub_f32 v{52+2*s_}, v{52+2*s_}, v60")
    for s_ in range(4): A(f"v_exp_f32 v{52+2*s_}, v{52+2*s_}")
    A("s_nop 0")
    A("v_mul_f32 v61, v52, v53")
    for s_ in range(1, 4): A(f"v_fmac_f32 v61, v{52+2*s_}, v{53+2*s_}")
    A("v_rcp_f32 v61, v61")
    A("s_nop 0")
    for s_ in range(4): A(f"v_mul_f32 v{52+2*s_}, v{52+2*s_}, v61")
    for c in range(4): A(f"v_mul_f32 v{36+c}, v{36+c}, v52")
    for s_ in range(1, 4):
        for c in range(4): A(f"v_fmac_f32 v{36+c}, v{36+4*s_+c}, v{52+2*s_}")
    A(f"""v_cvt_pk_bf16_f32 v40, v36, v37
    v_cvt_pk_bf16_f32 v41, v38, v39
    s_mul_i32 s{sT0}, s{sW}, 384
    s_add_u32 s{sT0}, s{sT0}, {OBF}
    v_lshlrev_b32 v32, 3, v{vL}
    v_add_u32 v32, s{sT0}, v32
    ds_write_b64 v32, v[40:41]
    s_mov_b64 exec, -1
    L_h1_done:
    s_waitcnt vmcnt(0) lgkmcnt(0)
    s_barrier""")
    stamp(12)
    A(f"s_sub_u32 s{sT0}, s{sW}, 2")
    A(f"s_cmp_lt_u32 s{sT0}, 5")
    A("s_cbranch_scc0 L_t3_done")
    A(f"""v_lshrrev_b32 v100, 4, v{vL}
    v_bfe_u32 v101, v{vL}, 2, 2
    v_and_b32 v102, 3, v{vL}
    v_lshlrev_b32 v102, 3, v102
    v_lshl_add_u32 v102, v101, 8, v102
    v_lshl_add_u32 v103, v100, 11, v102
    s_lshl_b32 s{sT1}, s{sT0}, 5
    v_add_u32 v103, s{sT1}, v103
    v_add_u32 v103, {WO}, v103
    v_and_b32 v105, 1, v101
    v_mul_u32_u24 v105, 384, v105
    v_lshl_add_u32 v105, v100, 4, v105""")
    for ks in range(6):
        A(f"ds_read_b128 v[{8+4*ks}:{11+4*ks}], v105 offset:{OBF + ks*64}")
    for ks in range(6):
        A(f"ds_read_b64_tr_b16 v[{32+4*ks}:{33+4*ks}], v103 offset:{ks*8192}")
        A(f"ds_read_b64_tr_b16 v[{34+4*ks}:{35+4*ks}], v103 offset:{ks*8192 + 1024}")
    A("s_waitcnt lgkmcnt(0)")
    A("v_mfma_f32_16x16x32_bf16 v[60:63], v[8:11], v[32:35], 0")
    A("v_mfma_f32_16x16x32_bf16 v[64:67], v[12:15], v[36:39], 0")
    for ks in range(2, 6):
        d = 60 + 4 * (ks & 1)
        A(f"v_mfma_f32_16x16x32_bf16 v[{d}:{d+3}], v[{8+4*ks}:{11+4*ks}], v[{32+4*ks}:{35+4*ks}], v[{d}:{d+3}]")
    A(f"""v_and_b32 v105, 15, v{vL}
    v_mul_u32_u24 v106, 320, v100
    v_lshl_add_u32 v106, v105, 2, v106
    s_lshl_b32 s{sT2}, s{sJ}, 5
    s_add_u32 s{sT2}, s{sT2}, s{sH}
    s_mul_i32 s{sT2}, s{sT2}, 640
    s_add_u32 s{sT2}, s{sT2}, {S_BASE}
    s_add_u32 s{sT2}, s{sT2}, s{sT1}
    s_add_u32 s{sT2}, s{sT2}, s{sT1}
    s_nop 4
    v_add_f32 v60, v60, v64
    s_mov_b32 exec_lo, -1
    s_mov_b32 exec_hi, 0
    buffer_store_dword v60, v106, {srd(R_WS)}, s{sT2} offen sc1
    s_mov_b64 exec, -1
    L_t3_done:""")
    stamp(13)
    A(f"s_cmp_eq_u32 s{sH}, 0")
    A("s_cbranch_scc0 L_fin_end")
    A(f"""v_lshrrev_b32 v100, 2, v0
    v_cmp_le_u32 vcc, 80, v100
    v_mov_b32 v101, 0
    v_mov_b32 v102, {1280 - 160}
    v_cndmask_b32 v101, v101, v102, vcc
    v_lshl_add_u32 v101, v100, 1, v101
    s_mul_i32 s{sT0}, s{sJ}, 160
    v_add_u32 v101, s{sT0}, v101
    buffer_load_ushort v103, v101, {srd(R_X)}, 0 offen
    s_lshl_b32 s{sT0}, s{sJ}, 5
    s_lshl_b32 s{sT1}, s{sW}, 1
    s_add_u32 s{sT0}, s{sT0}, s{sT1}
    s_mul_i32 s{sT0}, s{sT0}, 640
    s_add_u32 s{sT1}, s{sT0}, {S_BASE+640}
    s_add_u32 s{sT2}, s{sT0}, {G_BASE}
    s_add_u32 s{sT3}, s{sT0}, {G_BASE+640}
    s_add_u32 s{sT0}, s{sT0}, {S_BASE}
    v_lshlrev_b32 v32, 4, v{vL}
    s_mov_b32 exec_lo, -1
    s_mov_b32 exec_hi, 0xff
    s_mov_b32 s{sSP}, {P.SPIN}
    L_poll4:""")
    for s_ in range(4):
        A(f"buffer_load_dwordx4 v[{36+4*s_}:{39+4*s_}], v32, {srd(R_WS)}, s{sT0+s_} offen sc1")
    A("s_waitcnt vmcnt(0)")
    A("v_max3_u32 v60, v36, v37, v38")
    for k in range(39, 51, 2): A(f"v_max3_u32 v60, v60, v{k}, v{k+1}")
    A("v_max_u32 v60, v60, v51")
    A(f"""v_cmp_eq_u32 vcc, -1, v60
    s_cbranch_vccz L_poll4_ok
    s_sub_u32 s{sSP}, s{sSP}, 1
    s_cmp_lg_u32 s{sSP}, 0
    s_cbranch_scc1 L_poll4
    L_poll4_ok:""")
    stamp(14)
    for c in range(4):
        A(f"v_add_f32 v{36+c}, v{36+c}, v{40+c}")
        A(f"v_add_f32 v{44+c}, v{44+c}, v{48+c}")
    A(f"""s_mul_i32 s{sT0}, s{sW}, {FIN_STRIDE}
    v_add_u32 v32, s{sT0}, v32
    ds_write_b128 v32, v[36:39] offset:{FIN}
    ds_write_b128 v32, v[44:47] offset:{FIN+640}
    s_mov_b64 exec, -1
    s_waitcnt lgkmcnt(0)
    s_barrier
    s_cmp_ge_u32 s{sW}, 10
    s_cbranch_scc1 L_fin_end
    v_and_b32 v32, 3, v{vL}
    v_mul_u32_u24 v32, {FIN_STRIDE}, v32
    v_lshl_add_u32 v32, v100, 2, v32""")
    for ii in range(4):
        A(f"ds_read_b32 v{36+ii}, v32 offset:{FIN + ii*4*FIN_STRIDE}")
        A(f"ds_read_b32 v{40+ii}, v32 offset:{FIN + ii*4*FIN_STRIDE + 640}")
    A("s_waitcnt lgkmcnt(0)")
    A("""v_add_f32 v36, v36, v37
    v_add_f32 v38, v38, v39
    v_add_f32 v40, v40, v41
    v_add_f32 v42, v42, v43
    v_add_f32 v36, v36, v38
    v_add_f32 v40, v40, v42
    s_nop 1
    v_add_f32_dpp v36, v36, v36 quad_perm:[1,0,3,2] row_mask:0xf bank_mask:0xf
    v_add_f32_dpp v40, v40, v40 quad_perm:[1,0,3,2] row_mask:0xf bank_mask:0xf
    s_nop 1
    v_add_f32_dpp v36, v36, v36 quad_perm:[2,3,0,1] row_mask:0xf bank_mask:0xf
    v_add_f32_dpp v40, v40, v40 quad_perm:[2,3,0,1] row_mask:0xf bank_mask:0xf
    v_cvt_pk_bf16_f32 v36, v36, v40
    v_and_b32 v40, 0xffff0000, v36
    v_lshlrev_b32 v36, 16, v36""")
    A(f"""v_mul_f32 v41, {hex(LOG2E ^ 0x80000000)}, v40
    v_exp_f32 v41, v41
    s_nop 0
    v_add_f32 v41, 1.0, v41
    v_rcp_f32 v41, v41
    s_nop 0
    v_mul_f32 v40, v40, v41""")
    round_bf16(40)
    A("v_mul_f32 v36, v36, v40")
    round_bf16(36)
    A(f"""v_lshlrev_b32 v103, 16, v103
    v_add_f32 v36, v103, v36
    v_cvt_pk_bf16_f32 v36, v36, v36
    s_mov_b32 exec_lo, 0x11111111
    s_mov_b32 exec_hi, 0x11111111
    buffer_store_short v36, v101, {srd(R_OUT)}, 0 offen
    L_fin_end:""")
    if P.STAMPS:
        stamp(15)
        A(f"""s_mov_b64 exec, -1
        s_lshl_b32 s{sT0}, s2, 4
        s_add_u32 s{sT0}, s{sT0}, s{sW}
        s_lshl_b32 s{sT0}, s{sT0}, 7
        s_add_u32 s84, s{S_WS}, {STAMP_BASE}
        s_addc_u32 s85, s{S_WS+1}, 0
        """.replace("s84", "s100").replace("s85", "s101"))
        A(f"""s_mov_b32 s32, s100
        s_mov_b32 s33, s101
        s_mov_b32 s34, 0x1000000
        s_mov_b32 s35, 0x20000
        v_lshlrev_b32 v32, 2, v{vL}
        s_mov_b32 exec_lo, -1
        s_mov_b32 exec_hi, 0
        buffer_store_dword v{vSTAMP}, v32, s[32:35], s{sT0} offen""")
    A("L_end:")
    A("s_endpgm")
    A.footer(128, 102)
    return A.text()

if __name__ == "__main__":
    from build import build
    out = sys.argv[1] if len(sys.argv) > 1 else "main.s"
    for a in sys.argv[2:]:
        k, v = a.split("=")
        setattr(P, k, eval(v))
    open(out, "w").write(gen())
    build(out, out + ".co")
```

```python
import sys
from asmlib import Asm, NAME

class P:
    D = 2
    D0 = 4
    NS = 18
    STAMPS = False
    SPIN = 1 << 20
    NT = "nt"
    N0 = 3
    N1 = 5
    NB = 48
    TPRIO = 3
    START = 'prio'
    NK = 2

XN = 0
QB = 2560
HB = 2944
OBF = 3200
FLAGS = 3968
MW = 4032
LW = 4096
RED = 4160
RED_STRIDE = 784
W1, WD, WO = 20480, 71680, 83968
FIN = 20480
FIN_STRIDE = 328 * 4
LDS_BYTES = 133120
P_BASE = 0
P_REC = 2304
H1_BASE = 0x100000
S_BASE = 0x180000
G_BASE = 0x1C0000
WS_BYTES = 0x200000
STAMP_BASE = 0x10000000

S_X, S_K, S_V, S_WQ, S_WO, S_BX, S_WG, S_WU = 4, 6, 8, 10, 12, 14, 16, 18
S_WDN, S_OUT, S_DBG, S_WS = 20, 22, 24, 26
sH, sJ, sW, sB = 28, 29, 30, 31
R_K, R_V, R_WQ, R_WG, R_WU, R_WDN, R_WO, R_WS, R_DBG, R_X, R_OUT = 32, 36, 40, 44, 48, 52, 56, 60, 64, 68, 72
sG0 = 76
sT0, sT1, sT2, sT3, sT4, sT5 = 84, 85, 86, 87, 88, 89
sEX = 90
sM8 = 92
sSP = 94
sCI = 95
sID = 96
sST = 98
def srd(r): return f"s[{r}:{r+3}]"

vTID, vKV, vL = 0, 1, 2
vA, vB_, vC, vD_ = 3, 4, 5, 6
vS7 = 7
SLOT0 = 8
vQ = 80
vSc = 92
vT = 125
vACC = 80
vP = 104
vLW = 120
vM2 = 121
vFW = 122
vX0 = 123
vSTAMP = 124

LOG2E = 0x3fb8aa3b
SCALE = 0x3d93cd3a

def gen():
    A = Asm()
    A.header(256, 1024, LDS_BYTES)
    nst = [0]
    def stamp(k):
        if not P.STAMPS: return
        A(f"s_memrealtime s[{sST}:{sST+1}]")
        A("s_waitcnt lgkmcnt(0)")
        A(f"v_writelane_b32 v{vSTAMP}, s{sST}, {2*k}")
        A(f"v_writelane_b32 v{vSTAMP}, s{sST+1}, {2*k+1}")
    def slot(n): return SLOT0 + 4 * (n % P.NS)
    def kv_issue(n):
        r = slot(n)
        if n < 24:
            G, i = divmod(n, 3); R = R_K
        else:
            G, i = divmod(n - 24, 3); R = R_V
        A(f"buffer_load_dwordx4 v[{r}:{r+3}], v{vKV}, {srd(R)}, s{sG0+G} offen offset:{i*128} {P.NT}")

    A(f"""s_cmp_ge_u32 s2, 256
    s_cbranch_scc1 L_end
    s_load_dwordx16 s[4:19], s[0:1], 0
    s_load_dwordx8 s[20:27], s[0:1], 64""")
    if P.STAMPS:
        A(f"v_mov_b32 v{vSTAMP}, 0")
    stamp(0)
    A(f"""v_lshrrev_b32 v{vA}, 6, v0
    v_and_b32 v{vL}, 63, v0
    s_and_b32 s{sT0}, s2, 7
    v_readfirstlane_b32 s{sW}, v{vA}
    s_lshr_b32 s{sT1}, s2, 3
    s_and_b32 s{sJ}, s{sT1}, 7
    s_lshr_b32 s{sT1}, s{sT1}, 3
    s_lshl_b32 s{sH}, s{sT0}, 2
    s_add_u32 s{sH}, s{sH}, s{sT1}
    s_lshr_b32 s{sB}, s{sJ}, 2
    s_lshl_b32 s{sID}, s{sH}, 3
    s_add_u32 s{sID}, s{sID}, s{sJ}
    v_lshrrev_b32 v{vB_}, 3, v{vL}
    v_and_b32 v{vC}, 7, v{vL}
    v_lshlrev_b32 v{vC}, 4, v{vC}
    v_mul_u32_u24 v{vKV}, 384, v{vB_}
    v_add_u32 v{vKV}, v{vKV}, v{vC}
    s_mul_i32 s{sT2}, s{sW}, 24576
    v_add_u32 v{vKV}, s{sT2}, v{vKV}
    """)
    A(f"s_mov_b32 s{sG0}, 0"); A(f"s_mov_b32 s{sG0+1}, 3072")
    A(f"""s_lshl_b32 s{sT0}, s{sB}, 5
    s_add_u32 s{sT0}, s{sT0}, s{sH}
    s_mul_i32 s{sT0}, s{sT0}, 1572864
    s_and_b32 s{sT1}, s{sJ}, 3
    s_mul_i32 s{sT1}, s{sT1}, 393216
    s_add_u32 s{sT0}, s{sT0}, s{sT1}
    s_and_b32 s{sCI}, s{sH}, 3
    s_lshl_b32 s{sCI}, s{sCI}, 4
    s_lshr_b32 s{sT1}, s{sH}, 2
    s_add_u32 s{sCI}, s{sCI}, s{sT1}
    s_lshl_b32 s{sCI}, s{sCI}, 2
    v_mov_b32 v104, 0
    v_lshlrev_b32 v{vA}, 2, v{vL}
    v_add_u32 v{vA}, {FLAGS}, v{vA}
    s_cmp_eq_u32 s{sW}, 0
    s_cbranch_scc0 L_noz
    ds_write_b32 v{vA}, v104
    L_noz:
    s_waitcnt lgkmcnt(0)
    s_barrier""")
    stamp(10)
    def mk_srd(R, ptr, off_sgpr, size):
        if off_sgpr is None:
            A(f"s_mov_b32 s{R}, s{ptr}"); A(f"s_mov_b32 s{R+1}, s{ptr+1}")
        else:
            A(f"s_add_u32 s{R}, s{ptr}, s{off_sgpr}"); A(f"s_addc_u32 s{R+1}, s{ptr+1}, 0")
        A(f"s_mov_b32 s{R+2}, {size}"); A(f"s_mov_b32 s{R+3}, 0x20000")
    mk_srd(R_K, S_K, sT0, 393216)
    A(f"s_mov_b32 s{sT5}, s{sT0}")
    stamp(8) if False else None
    N0 = P.N0
    pre = P.NK if P.START == 'kfirst' else 0
    for n in range(pre): kv_issue(n)
    A(f"s_cmp_ge_u32 s{sW}, 10")
    A("s_cbranch_scc1 L_role_hi")
    A("s_setprio 3")
    A(f"s_cmp_ge_u32 s{sW}, 2")
    A("s_cbranch_scc1 L_role_w1")
    mk_srd(R_X, S_X, None, 2560)
    A(f"""s_mul_i32 s{sT0}, s{sW}, 1280
    v_lshlrev_b32 v{vA}, 2, v{vL}""")
    for t in range(5):
        A(f"buffer_load_dword v{100+t}, v{vA}, {srd(R_X)}, s{sT0} offen offset:{t*256}")
    A("L_role_w1:")
    A(f"s_mul_i32 s{sT0}, s{sJ}, {80*12288}"); A(f"s_mul_i32 s{sT1}, s{sH}, 384"); A(f"s_add_u32 s{sT0}, s{sT0}, s{sT1}")
    mk_srd(R_WQ, S_WQ, sT0, 79 * 12288 + 384)
    A(f"""v_mul_u32_u24 v{vA}, 12288, v{vB_}
    v_add_u32 v{vA}, v{vA}, v{vC}
    s_mul_i32 s{sT0}, s{sW}, 98304
    s_mul_i32 s{sT1}, s{sW}, 5120""")
    for i in range(3):
        A(f"s_add_u32 m0, s{sT1}, {W1 + i*1024}")
        A(f"s_add_u32 s{sT2}, s{sT0}, {i*128}")
        A(f"buffer_load_dwordx4 v{vA}, {srd(R_WQ)}, s{sT2} offen {P.NT} lds")
    A(f"s_mul_i32 s{sT0}, s{sJ}, {80*3072}"); A(f"s_mul_i32 s{sT2}, s{sH}, 96"); A(f"s_add_u32 s{sT0}, s{sT0}, s{sT2}")
    mk_srd(R_WG, S_WG, sT0, 79 * 3072 + 96)
    mk_srd(R_WU, S_WU, sT0, 79 * 3072 + 96)
    A(f"""v_mul_u32_u24 v{vD_}, 3072, v{vB_}
    v_add_u32 v{vD_}, v{vD_}, v{vC}
    s_mul_i32 s{sT0}, s{sW}, 24576
    s_mov_b32 exec_lo, 0x3f3f3f3f
    s_mov_b32 exec_hi, 0x3f3f3f3f
    s_add_u32 m0, s{sT1}, {W1 + 3072}
    s_nop 0
    buffer_load_dwordx4 v{vD_}, {srd(R_WG)}, s{sT0} offen {P.NT} lds
    s_add_u32 m0, s{sT1}, {W1 + 4096}
    s_nop 0
    buffer_load_dwordx4 v{vD_}, {srd(R_WU)}, s{sT0} offen {P.NT} lds
    s_mov_b64 exec, -1
    s_setprio 0""")
    if P.START == 'b0': A("s_barrier")
    A("s_branch L_role_done")
    A("L_role_hi:")
    A(f"s_cmp_eq_u32 s{sW}, 10")
    A("s_cbranch_scc0 L_no10")
    A("s_setprio 3")
    mk_srd(R_WS, S_WS, None, WS_BYTES)
    A(f"""v_mov_b32 v100, -1
    v_mov_b32 v101, -1
    v_mov_b32 v102, -1
    v_mov_b32 v103, -1
    v_lshlrev_b32 v{vA}, 4, v{vL}
    s_mul_i32 s{sT0}, s{sID}, {P_REC}
    s_add_u32 s{sT1}, s{sT0}, 1024
    s_add_u32 s{sT2}, s{sT0}, 2048
    buffer_store_dwordx4 v[100:103], v{vA}, {srd(R_WS)}, s{sT0} offen sc1
    buffer_store_dwordx4 v[100:103], v{vA}, {srd(R_WS)}, s{sT1} offen sc1
    s_mov_b32 exec_lo, 0xffff
    s_mov_b32 exec_hi, 0
    buffer_store_dwordx4 v[100:103], v{vA}, {srd(R_WS)}, s{sT2} offen sc1
    s_lshl_b32 s{sT0}, s{sID}, 10
    s_add_u32 s{sT0}, s{sT0}, {H1_BASE}
    s_mov_b32 exec_lo, -1
    s_mov_b32 exec_hi, 0x1ffff
    buffer_store_dwordx4 v[100:103], v{vA}, {srd(R_WS)}, s{sT0} offen sc1
    s_lshl_b32 s{sT0}, s{sJ}, 5
    s_add_u32 s{sT0}, s{sT0}, s{sH}
    s_mul_i32 s{sT0}, s{sT0}, 640
    s_add_u32 s{sT1}, s{sT0}, {S_BASE}
    s_add_u32 s{sT2}, s{sT0}, {G_BASE}
    s_mov_b32 exec_hi, 0xff
    buffer_store_dwordx4 v[100:103], v{vA}, {srd(R_WS)}, s{sT1} offen sc1
    buffer_store_dwordx4 v[100:103], v{vA}, {srd(R_WS)}, s{sT2} offen sc1
    s_mov_b64 exec, -1""")
    if P.START == 'b0': A("s_barrier")
    mk_srd(R_DBG, S_DBG, None, 256)
    A(f"""v_mov_b32 v100, {FLAGS+4}
    v_mov_b32 v101, 1
    s_waitcnt vmcnt(0)
    s_mov_b64 exec, 1
    buffer_atomic_add v101, off, {srd(R_DBG)}, s{sCI}
    ds_write_b32 v100, v101
    s_mov_b64 exec, -1
    s_setprio 0
    s_branch L_hi2
    L_no10:""")
    if P.START == 'b0': A("s_barrier")
    A("L_hi2:")
    A(f"s_sub_u32 s{sT0}, s{sW}, 11")
    A(f"s_cmp_lt_u32 s{sT0}, 4")
    A("s_cbranch_scc0 L_role_done")
    A(f"s_mul_i32 s{sT2}, s{sH}, {48*1280}"); A(f"s_mul_i32 s{sT1}, s{sJ}, 160"); A(f"s_add_u32 s{sT2}, s{sT2}, s{sT1}")
    mk_srd(R_WDN, S_WDN, sT2, 47 * 1280 + 160)
    A(f"""v_lshrrev_b32 v{vA}, 4, v{vL}
    v_mul_u32_u24 v{vA}, 1280, v{vA}
    v_and_b32 v{vD_}, 15, v{vL}
    v_lshl_add_u32 v{vA}, v{vD_}, 4, v{vA}
    s_mul_i32 s{sT1}, s{sT0}, 3072
    s_mul_i32 s{sT0}, s{sT0}, {12*1280}
    s_mov_b32 exec_lo, 0x03ff03ff
    s_mov_b32 exec_hi, 0x03ff03ff""")
    for u in range(3):
        A(f"s_add_u32 m0, s{sT1}, {WD + u*1024}")
        A(f"s_add_u32 s{sT2}, s{sT0}, {u*4*1280}")
        A(f"buffer_load_dwordx4 v{vA}, {srd(R_WDN)}, s{sT2} offen {P.NT} lds")
    A("s_mov_b64 exec, -1")
    A("L_role_done:")
    for n in range(pre, N0): kv_issue(n)
    mk_srd(R_V, S_V, sT5, 393216)
    mk_srd(R_WS, S_WS, None, WS_BYTES)
    mk_srd(R_DBG, S_DBG, None, 256)
    mk_srd(R_X, S_X, None, 2560)
    mk_srd(R_OUT, S_OUT, None, 2560)
    A(f"s_mul_i32 s{sT0}, s{sH}, {192*1280}"); A(f"s_mul_i32 s{sT1}, s{sJ}, 160"); A(f"s_add_u32 s{sT0}, s{sT0}, s{sT1}")
    mk_srd(R_WO, S_WO, sT0, 191 * 1280 + 160)
    for G in range(1, 8): A(f"s_mov_b32 s{sG0+G}, {G*3072}")
    A(f"s_mov_b32 s{sM8}, 0xff00ff00"); A(f"s_mov_b32 s{sM8+1}, 0xff00ff00")
    stamp(2)
    A(f"s_mov_b32 s{sT0}, s{sW}")
    A(f"s_cmp_lt_u32 s{sT0}, 2")
    A("s_cbranch_scc0 L_noln")
    A(f"s_waitcnt vmcnt({5 + N0 - pre})")
    for t in range(5):
        A(f"v_lshlrev_b32 v{105+2*t}, 16, v{100+t}")
        A(f"v_and_b32 v{106+2*t}, 0xffff0000, v{100+t}")
    def wave_sum(r, tmp):
        A("s_nop 1")
        A(f"v_add_f32_dpp v{r}, v{r}, v{r} quad_perm:[1,0,3,2] row_mask:0xf bank_mask:0xf")
        A("s_nop 1")
        A(f"v_add_f32_dpp v{r}, v{r}, v{r} quad_perm:[2,3,0,1] row_mask:0xf bank_mask:0xf")
        A("s_nop 1")
        A(f"v_add_f32_dpp v{r}, v{r}, v{r} row_half_mirror row_mask:0xf bank_mask:0xf")
        row_hi_reduce(r, tmp, "add")
    def row_hi_reduce(r, tmp, op):
        A("s_nop 1")
        A(f"v_{op}_f32_dpp v{r}, v{r}, v{r} row_ror:8 row_mask:0xf bank_mask:0xf")
        A(f"v_mov_b32 v{tmp}, v{r}")
        A("s_nop 1")
        A(f"v_permlane16_swap_b32 v{r}, v{tmp}")
        A(f"v_{op}_f32 v{r}, v{r}, v{tmp}")
        A(f"v_mov_b32 v{tmp}, v{r}")
        A("s_nop 1")
        A(f"v_permlane32_swap_b32 v{r}, v{tmp}")
        A(f"v_{op}_f32 v{r}, v{r}, v{tmp}")
    def round_bf16(r, tmp=None):
        A(f"v_cvt_pk_bf16_f32 v{r}, v{r}, v{r}")
        A(f"v_and_b32 v{r}, 0xffff0000, v{r}")
    A("v_add_f32 v115, v105, v106")
    for t in range(107, 115): A(f"v_add_f32 v115, v115, v{t}")
    wave_sum(115, 116)
    A("v_mul_f32 v115, 0x3acccccd, v115")
    A("v_mov_b32 v117, 0")
    for t in range(105, 115):
        A(f"v_sub_f32 v116, v{t}, v115")
        A(f"v_fmac_f32 v117, v116, v116")
    wave_sum(117, 116)
    A("v_mul_f32 v117, 0x3acccccd, v117")
    round_bf16(117)
    A("v_add_f32 v117, 0x3727c5ac, v117")
    round_bf16(117)
    A("v_sqrt_f32 v117, v117")
    A("s_nop 0")
    round_bf16(117)
    A("v_rcp_f32 v118, v117")
    round_bf16(115)
    for t in range(105, 115):
        A(f"v_sub_f32 v{t}, v{t}, v115")
    for t in range(105, 115, 2):
        A(f"v_cvt_pk_bf16_f32 v116, v{t}, v{t+1}")
        A(f"v_lshlrev_b32 v{t}, 16, v116")
        A(f"v_and_b32 v{t+1}, 0xffff0000, v116")
    for t in range(105, 115):
        A(f"v_mul_f32 v116, v{t}, v118")
        A(f"v_fma_f32 v119, -v116, v117, v{t}")
        A(f"v_fma_f32 v{t}, v119, v118, v116")
    A(f"v_lshlrev_b32 v{vA}, 2, v{vL}")
    A(f"s_mul_i32 s{sT0}, s{sT0}, 1280")
    A(f"s_add_u32 s{sT0}, s{sT0}, {XN}")
    A(f"v_add_u32 v{vA}, s{sT0}, v{vA}")
    for t in range(5):
        A(f"v_cvt_pk_bf16_f32 v116, v{105+2*t}, v{106+2*t}")
        A(f"ds_write_b32 v{vA}, v116 offset:{t*256}")
    A("L_noln:")
    A(f"s_cmp_lt_u32 s{sW}, 10")
    A("s_cbranch_scc1 L_cnt_w1")
    A(f"s_sub_u32 s{sT0}, s{sW}, 11")
    A(f"s_cmp_lt_u32 s{sT0}, 4")
    A("s_cbranch_scc0 L_stream")
    A(f"""s_waitcnt vmcnt({N0 - pre})
    v_mov_b32 v100, {FLAGS+16}
    v_mov_b32 v101, 1
    s_mov_b64 exec, 1
    ds_add_u32 v100, v101
    s_mov_b64 exec, -1
    s_branch L_stream
    L_cnt_w1:
    s_waitcnt vmcnt({N0 - pre}) lgkmcnt(0)""")
    stamp(12)
    A(f"""v_mov_b32 v100, {FLAGS+12}
    v_mov_b32 v101, 1
    s_mov_b64 exec, 1
    ds_add_u32 v100, v101
    s_mov_b64 exec, -1
    s_cmp_ge_u32 s{sW}, 9
    s_cbranch_scc1 L_stream
    L_ww1:
    ds_read_b32 v101, v100
    s_waitcnt lgkmcnt(0)
    v_readfirstlane_b32 s{sT0}, v101
    s_cmp_ge_u32 s{sT0}, 10
    s_cbranch_scc1 L_w1_ok
    s_sleep 1
    s_branch L_ww1
    L_w1_ok:
    s_setprio {P.TPRIO}""")
    stamp(1)
    vg, vq, ve = 100, 101, 102
    A(f"""v_lshrrev_b32 v{vg}, 4, v{vL}
    v_bfe_u32 v{vq}, v{vL}, 2, 2
    v_and_b32 v{ve}, 3, v{vL}
    v_lshlrev_b32 v{ve}, 3, v{ve}
    v_lshl_add_u32 v{ve}, v{vq}, 7, v{ve}          ; q*128 + e*8
    v_mul_u32_u24 v103, 5120, v{vg}
    v_add_u32 v103, v103, v{ve}
    v_lshrrev_b32 v104, 1, v{vg}
    v_add_u32 v104, 8, v104
    v_mul_u32_u24 v104, 5120, v104
    v_and_b32 v105, 1, v{vg}
    v_lshl_add_u32 v104, v105, 9, v104
    v_add_u32 v104, v104, v{ve}                    ; vb16
    v_and_b32 v105, 1, v{vq}
    v_mul_u32_u24 v105, 1280, v105
    s_mul_i32 s{sT0}, s{sJ}, 160
    s_add_u32 s{sT0}, s{sT0}, {XN}
    v_add_u32 v105, s{sT0}, v105
    v_lshl_add_u32 v106, v{vg}, 4, v105
    v_lshl_add_u32 v107, v{vg}, 3, v105
    ds_read_b128 v[32:35], v106
    ds_read_b128 v[36:39], v106 offset:64
    ds_read_b64 v[40:41], v107 offset:128""")
    for tt in range(2):
        sT = sT1 + tt
        A(f"s_lshl_b32 s{sT3}, s{sW}, 1")
        if tt: A(f"s_add_u32 s{sT3}, s{sT3}, 1")
        A(f"""s_lshr_b32 s{sT4}, s{sT3}, 2
        s_lshl_b32 s{sT4}, s{sT4}, 10
        s_and_b32 s{sT5}, s{sT3}, 3
        s_lshl_b32 s{sT5}, s{sT5}, 5
        s_add_u32 s{sT}, s{sT4}, s{sT5}
        s_cmp_lt_u32 s{sT3}, 12
        s_cbranch_scc1 L_toff{tt}
        s_sub_u32 s{sT4}, s{sT3}, 12
        s_lshl_b32 s{sT4}, s{sT4}, 5
        s_add_u32 s{sT}, s{sT4}, 3072
        s_cmp_lt_u32 s{sT3}, 15
        s_cbranch_scc1 L_toff{tt}
        s_sub_u32 s{sT4}, s{sT3}, 15
        s_lshl_b32 s{sT4}, s{sT4}, 5
        s_add_u32 s{sT}, s{sT4}, 4096
        L_toff{tt}:""")
        b0 = 44 + tt * 12
        A(f"v_add_u32 v108, s{sT}, v103")
        A(f"v_add_u32 v109, s{sT}, v104")
        A(f"ds_read_b64_tr_b16 v[{b0}:{b0+1}], v108 offset:{W1}")
        A(f"ds_read_b64_tr_b16 v[{b0+2}:{b0+3}], v108 offset:{W1+512}")
        A(f"ds_read_b64_tr_b16 v[{b0+4}:{b0+5}], v108 offset:{W1+20480}")
        A(f"ds_read_b64_tr_b16 v[{b0+6}:{b0+7}], v108 offset:{W1+20480+512}")
        A(f"ds_read_b64_tr_b16 v[{b0+8}:{b0+9}], v109 offset:{W1}")
    A("s_waitcnt lgkmcnt(0)")
    for tt in range(2):
        b0 = 44 + tt * 12; d0 = 68 + tt * 4
        A(f"v_mfma_f32_16x16x32_bf16 v[{d0}:{d0+3}], v[32:35], v[{b0}:{b0+3}], 0")
    for tt in range(2):
        b0 = 44 + tt * 12; d0 = 68 + tt * 4
        A(f"v_mfma_f32_16x16x32_bf16 v[{d0}:{d0+3}], v[36:39], v[{b0+4}:{b0+7}], v[{d0}:{d0+3}]")
    for tt in range(2):
        b0 = 44 + tt * 12; d0 = 68 + tt * 4
        A(f"v_mfma_f32_16x16x16_bf16 v[{d0}:{d0+3}], v[40:41], v[{b0+8}:{b0+9}], v[{d0}:{d0+3}]")
    A(f"""v_and_b32 v105, 15, v{vL}
    v_mul_u32_u24 v106, 1152, v{vg}
    v_lshl_add_u32 v107, v105, 2, v106            ; q-form: b*1152 + n*4
    v_lshrrev_b32 v108, 1, v105
    v_lshl_add_u32 v106, v108, 4, v106
    v_and_b32 v108, 1, v105
    v_lshl_add_u32 v106, v108, 2, v106            ; f-form: b*1152 + (n>>1)*16 + (n&1)*4
    s_mul_i32 s{sT0}, s{sID}, {P_REC}""")
    for tt in range(2):
        A(f"s_lshl_b32 s{sT3}, s{sW}, 1")
        if tt: A(f"s_add_u32 s{sT3}, s{sT3}, 1")
        A(f"""s_lshl_b32 s{sT1+tt}, s{sT3}, 6
        s_cmp_lt_u32 s{sT3}, 12
        s_cbranch_scc1 L_sb{tt}
        s_sub_u32 s{sT4}, s{sT3}, 12
        s_lshl_b32 s{sT4}, s{sT4}, 7
        s_add_u32 s{sT1+tt}, s{sT4}, 768
        s_cmp_lt_u32 s{sT3}, 15
        s_cbranch_scc1 L_sb{tt}
        s_sub_u32 s{sT4}, s{sT3}, 15
        s_lshl_b32 s{sT4}, s{sT4}, 7
        s_add_u32 s{sT1+tt}, s{sT4}, 776
        L_sb{tt}:
        s_add_u32 s{sT1+tt}, s{sT1+tt}, s{sT0}""")
    A(f"""s_cmp_ge_u32 s{sW}, 6
    s_cbranch_scc0 L_qform
    v_mov_b32 v107, v106
    L_qform:
    v_mov_b32 v105, {FLAGS+4}
    L_wclr:
    ds_read_b32 v108, v105
    s_waitcnt lgkmcnt(0)
    v_readfirstlane_b32 s{sT3}, v108
    s_cmp_lg_u32 s{sT3}, 0
    s_cbranch_scc1 L_clr_ok
    s_sleep 1
    s_branch L_wclr
    L_clr_ok:
    s_mov_b32 exec_lo, -1
    s_mov_b32 exec_hi, 0
    s_nop 4
    buffer_store_dword v68, v107, {srd(R_WS)}, s{sT1} offen sc1
    buffer_store_dword v72, v107, {srd(R_WS)}, s{sT2} offen sc1
    s_mov_b64 exec, -1""")
    A("s_setprio 0")
    stamp(8)
    A(f"s_cmp_eq_u32 s{sW}, 0")
    A("s_cbranch_scc1 L_control")

    def consume_k(G):
        acc = vSc + G
        A(f"v_mov_b32 v{acc}, 0")
        for i in range(3):
            r = slot(3 * G + i)
            for t in range(4):
                A(f"v_dot2c_f32_bf16 v{acc}, v{r+t}, v{vQ+4*i+t}")
        A("s_nop 2")
        A(f"v_add_f32_dpp v{acc}, v{acc}, v{acc} quad_perm:[1,0,3,2] row_mask:0xf bank_mask:0xf")
        A("s_nop 1")
        A(f"v_add_f32_dpp v{acc}, v{acc}, v{acc} quad_perm:[2,3,0,1] row_mask:0xf bank_mask:0xf")
        A("s_nop 1")
        A(f"v_add_f32_dpp v{acc}, v{acc}, v{acc} row_half_mirror row_mask:0xf bank_mask:0xf")
    def round8(tmp):
        for k in range(4):
            a, b = vSc + 2 * k, vSc + 2 * k + 1
            A(f"v_cvt_pk_bf16_f32 v{tmp}, v{a}, v{b}")
            A(f"v_lshlrev_b32 v{a}, 16, v{tmp}")
            A(f"v_and_b32 v{b}, 0xffff0000, v{tmp}")
    def softmax(tag):
        A("s_nop 1")
        round8(vT)
        for k in range(8): A(f"v_mul_f32 v{vSc+k}, {hex(SCALE)}, v{vSc+k}")
        round8(vT)
        A(f"v_max3_f32 v{vM2}, v{vSc}, v{vSc+1}, v{vSc+2}")
        A(f"v_max3_f32 v{vM2}, v{vM2}, v{vSc+3}, v{vSc+4}")
        A(f"v_max3_f32 v{vM2}, v{vM2}, v{vSc+5}, v{vSc+6}")
        A(f"v_max_f32 v{vM2}, v{vM2}, v{vSc+7}")
        row_hi_reduce(vM2, vT, "max")
        A(f"v_mul_f32 v{vM2}, {hex(LOG2E)}, v{vM2}")
        A(f"s_mov_b32 s{sT0}, {hex(LOG2E)}")
        for k in range(8): A(f"v_fma_f32 v{vSc+k}, v{vSc+k}, s{sT0}, -v{vM2}")
        for k in range(8): A(f"v_exp_f32 v{vSc+k}, v{vSc+k}")
        A("s_nop 0")
        A(f"v_add_f32 v{vLW}, v{vSc}, v{vSc+1}")
        for k in range(2, 8): A(f"v_add_f32 v{vLW}, v{vLW}, v{vSc+k}")
        for k in range(4):
            a, b = vSc + 2 * k, vSc + 2 * k + 1
            A(f"v_cvt_pk_bf16_f32 v{vT}, v{a}, v{b}")
            A(f"v_and_b32 v{vP+4*k}, 0xffff, v{vT}")
            A(f"v_lshlrev_b32 v{vP+4*k+1}, 16, v{vT}")
            A(f"v_lshrrev_b32 v{vP+4*k+2}, 16, v{vT}")
            A(f"v_and_b32 v{vP+4*k+3}, 0xffff0000, v{vT}")
        row_hi_reduce(vLW, vT, "add")
        A(f"s_lshl_b32 s{sT0}, s{sW}, 2")
        A(f"s_add_u32 s{sT0}, s{sT0}, {MW}")
        A(f"v_mov_b32 v{vT}, s{sT0}")
        A(f"v_mov_b32 v{vT+1}, {FLAGS+8}")
        A(f"v_mov_b32 v{vT+2}, 1")
        A("s_mov_b64 exec, 1")
        A(f"ds_write_b32 v{vT}, v{vM2}")
        A(f"ds_add_u32 v{vT+1}, v{vT+2}")
        A("s_mov_b64 exec, -1")
        for k in range(24): A(f"v_mov_b32 v{vACC+k}, 0")
    def consume_v(n):
        G, i = divmod(n - 24, 3)
        r = slot(n)
        for t in range(4):
            A(f"v_dot2c_f32_bf16 v{vACC+8*i+2*t}, v{r+t}, v{vP+2*G}")
            A(f"v_dot2c_f32_bf16 v{vACC+8*i+2*t+1}, v{r+t}, v{vP+2*G+1}")
    def read_q():
        A(f"v_and_b32 v{vT}, 7, v{vL}")
        A(f"v_lshlrev_b32 v{vT}, 4, v{vT}")
        A(f"v_add_u32 v{vT}, {QB}, v{vT}")
        for i in range(3):
            A(f"ds_read_b128 v[{vQ+4*i}:{vQ+4*i+3}], v{vT} offset:{i*128}")
        A("s_waitcnt lgkmcnt(0)")
    def wo_dma():
        A(f"""v_lshrrev_b32 v{vT}, 4, v{vL}
        v_mul_u32_u24 v{vT}, 1280, v{vT}
        v_and_b32 v{vT+1}, 15, v{vL}
        v_lshl_add_u32 v{vT}, v{vT+1}, 4, v{vT}
        s_mul_i32 s{sT0}, s{sW}, {12*1280}
        s_mul_i32 s{sT1}, s{sW}, 3072
        s_mov_b32 exec_lo, 0x03ff03ff
        s_mov_b32 exec_hi, 0x03ff03ff""")
        for u in range(3):
            A(f"s_add_u32 m0, s{sT1}, {WO + u*1024}")
            A(f"s_add_u32 s{sT2}, s{sT0}, {u*4*1280}")
            A(f"buffer_load_dwordx4 v{vT}, {srd(R_WO)}, s{sT2} offen {P.NT} lds")
        A("s_mov_b64 exec, -1")
    def stream(D, issued, tag, waitq):
        NS = P.NS
        n = issued
        arrived = 0
        while n < NS:
            if n - arrived >= D:
                A(f"s_waitcnt vmcnt({D-1})")
                arrived = n - D + 1
            kv_issue(n); n += 1
        if waitq:
            A(f"v_mov_b32 v{vT}, {FLAGS}")
            A(f"L_wq_{tag}:")
            A(f"ds_read_b32 v{vT+1}, v{vT}")
            A("s_waitcnt lgkmcnt(0)")
            A(f"v_readfirstlane_b32 s{sT0}, v{vT+1}")
            A(f"s_cmp_lg_u32 s{sT0}, 0")
            A(f"s_cbranch_scc1 L_gotq_{tag}")
            A("s_sleep 2")
            A(f"s_branch L_wq_{tag}")
            A(f"L_gotq_{tag}:")
        read_q()
        stamp(3)
        consumed = 0
        sm_done = False
        def consume_upto(lim):
            nonlocal consumed, sm_done
            while True:
                if consumed < 24:
                    if consumed + 3 <= lim:
                        consume_k(consumed // 3); consumed += 3
                        if consumed == 24:
                            softmax(tag); sm_done = True; stamp(4)
                    else: break
                else:
                    if consumed < lim:
                        consume_v(consumed); consumed += 1
                    else: break
        while n < 48:
            need = n - NS + 1
            if consumed < need:
                lim = need if need > 24 else ((need + 2) // 3) * 3
                if arrived < lim:
                    A(f"s_waitcnt vmcnt({n - lim})")
                    arrived = lim
                consume_upto(lim)
            if n - arrived >= D and n < P.NB:
                A(f"s_waitcnt vmcnt({D-1})")
                arrived = max(arrived, n - D + 1)
            kv_issue(n); n += 1
            consume_upto(arrived)
        wo_dma()
        A(f"v_mov_b32 v{vT}, {FLAGS+8}")
        A(f"L_wm_{tag}:")
        A(f"ds_read_b32 v{vT+1}, v{vT}")
        A("s_waitcnt lgkmcnt(0)")
        A(f"v_readfirstlane_b32 s{sT0}, v{vT+1}")
        A(f"s_cmp_ge_u32 s{sT0}, 16")
        A(f"s_cbranch_scc1 L_gotm_{tag}")
        A("s_sleep 1")
        A(f"s_branch L_wm_{tag}")
        A(f"L_gotm_{tag}:")
        A(f"v_and_b32 v{vT}, 15, v{vL}")
        A(f"v_lshlrev_b32 v{vT}, 2, v{vT}")
        A(f"v_add_u32 v{vT}, {MW}, v{vT}")
        A(f"ds_read_b32 v{vFW}, v{vT}")
        A("s_waitcnt lgkmcnt(0)")
        for sh in (8, 4, 2, 1):
            A("s_nop 1")
            A(f"v_max_f32_dpp v{vFW}, v{vFW}, v{vFW} row_ror:{sh} row_mask:0xf bank_mask:0xf")
        A(f"v_sub_f32 v{vT}, v{vM2}, v{vFW}")
        A(f"v_mov_b32 v{vM2}, v{vFW}")
        A(f"v_exp_f32 v{vFW}, v{vT}")
        A("s_nop 0")
        A(f"v_mul_f32 v{vLW}, v{vLW}, v{vFW}")
        for k in range(arrived, 48):
            A(f"s_waitcnt vmcnt({47 - k + 3})")
            consume_upto(k + 1)
        stamp(5)
        A("s_branch L_tail")

    A("L_stream:")
    stream(P.D, N0, "a", True)

    A("L_control:")
    A("s_setprio 3")
    A(f"s_mov_b32 s{sSP}, {P.SPIN}")
    A("L_poll1:")
    A(f"""buffer_load_dword v32, off, {srd(R_DBG)}, s{sCI} sc1
    s_waitcnt vmcnt(0)
    v_readfirstlane_b32 s{sT0}, v32
    s_cmp_ge_u32 s{sT0}, 8
    s_cbranch_scc1 L_poll1_ok
    s_sleep 4
    s_sub_u32 s{sSP}, s{sSP}, 1
    s_cmp_lg_u32 s{sSP}, 0
    s_cbranch_scc1 L_poll1
    L_poll1_ok:""")
    stamp(6)
    A(f"""s_mov_b32 exec_lo, -1
    s_mov_b32 exec_hi, 0xffff
    v_lshlrev_b32 v100, 4, v{vL}
    v_cmp_le_u32 vcc, 24, v{vL}
    v_mov_b32 v101, 768
    v_mov_b32 v102, {768 + 1152 - 384}
    v_cndmask_b32 v101, v101, v102, vcc
    v_add_u32 v101, v101, v100
    s_lshl_b32 s{sT0}, s{sH}, 3
    s_mul_i32 s{sT0}, s{sT0}, {P_REC}
    s_mul_i32 s{sT1}, s{sB}, 1152
    s_add_u32 s{sT1}, s{sT1}, s{sT0}""")
    A(f"s_mov_b32 s{sSP}, {P.SPIN}")
    A("L_pollg:")
    A(f"s_mov_b32 s{sT2}, s{sT1}"); A(f"s_mov_b32 s{sT3}, s{sT0}")
    for jj in range(8):
        A(f"buffer_load_dwordx4 v[{32+4*jj}:{35+4*jj}], v100, {srd(R_WS)}, s{sT2} offen sc1")
        if jj < 7: A(f"s_add_u32 s{sT2}, s{sT2}, {P_REC}")
    for jj in range(8):
        A(f"buffer_load_dwordx4 v[{64+4*jj}:{67+4*jj}], v101, {srd(R_WS)}, s{sT3} offen sc1")
        if jj < 7: A(f"s_add_u32 s{sT3}, s{sT3}, {P_REC}")
    A("s_waitcnt vmcnt(0)")
    A("v_max3_u32 v102, v32, v33, v34")
    for k in range(35, 95, 2): A(f"v_max3_u32 v102, v102, v{k}, v{k+1}")
    A("v_max_u32 v102, v102, v95")
    A(f"""v_cmp_eq_u32 vcc, -1, v102
    s_cbranch_vccz L_pollg_ok
    s_sub_u32 s{sSP}, s{sSP}, 1
    s_cmp_lg_u32 s{sSP}, 0
    s_cbranch_scc1 L_pollg
    L_pollg_ok:""")
    for jj in range(1, 8):
        for c in range(4): A(f"v_add_f32 v{32+c}, v{32+c}, v{32+4*jj+c}")
    A("""v_cvt_pk_bf16_f32 v36, v32, v33
    v_cvt_pk_bf16_f32 v37, v34, v35""")
    A(f"v_lshlrev_b32 v102, 3, v{vL}")
    A(f"v_add_u32 v102, {QB}, v102")
    A("ds_write_b64 v102, v[36:37]")
    A(f"v_mov_b32 v103, {FLAGS}")
    A("v_mov_b32 v104, 1")
    A("ds_write_b32 v103, v104")
    stamp(7)
    for jj in range(1, 8):
        for c in range(4): A(f"v_add_f32 v{64+c}, v{64+c}, v{64+4*jj+c}")
    A("""v_cvt_pk_bf16_f32 v68, v64, v65
    v_cvt_pk_bf16_f32 v69, v66, v67
    v_lshlrev_b32 v64, 16, v68
    v_and_b32 v65, 0xffff0000, v68
    v_lshlrev_b32 v66, 16, v69
    v_and_b32 v67, 0xffff0000, v69""")
    import struct, math
    def f2h(x): return hex(struct.unpack("<I", struct.pack("<f", x))[0])
    c1 = -2 * math.sqrt(2 / math.pi) * math.log2(math.e)
    c2 = c1 * 0.044715
    A(f"s_mov_b32 s{sT0}, {f2h(c2)}")
    A(f"v_mov_b32 v72, {f2h(c1)}")
    for k in range(2):
        x = 64 + k
        A(f"v_mul_f32 v70, v{x}, v{x}")
        A(f"v_fma_f32 v70, v70, s{sT0}, v72")
        A(f"v_mul_f32 v70, v70, v{x}")
        A(f"v_exp_f32 v70, v70")
        A("s_nop 0")
        A(f"v_add_f32 v70, 1.0, v70")
        A(f"v_rcp_f32 v71, v70")
        A("s_nop 0")
        A(f"v_mul_f32 v{x}, v{x}, v71")
    A("""v_cvt_pk_bf16_f32 v68, v64, v65
    v_lshlrev_b32 v64, 16, v68
    v_and_b32 v65, 0xffff0000, v68
    v_mul_f32 v64, v64, v66
    v_mul_f32 v65, v65, v67
    v_cvt_pk_bf16_f32 v68, v64, v65""")
    A(f"v_lshlrev_b32 v102, 2, v{vL}")
    A(f"v_add_u32 v102, {HB}, v102")
    A("ds_write_b32 v102, v68")
    A("s_mov_b64 exec, -1")
    A(f"""v_lshrrev_b32 v100, 4, v{vL}
    v_bfe_u32 v101, v{vL}, 2, 2
    v_and_b32 v102, 3, v{vL}
    v_lshlrev_b32 v102, 3, v102
    v_lshl_add_u32 v102, v101, 8, v102          ; q*256 + e*8
    v_lshl_add_u32 v103, v100, 11, v102         ; + g*8*256
    v_lshl_add_u32 v104, v100, 10, v102         ; + g*4*256
    v_add_u32 v103, {WD}, v103
    v_add_u32 v104, {WD}, v104
    v_and_b32 v105, 1, v101
    v_mul_u32_u24 v105, 96, v105
    v_add_u32 v105, {HB}, v105
    v_lshl_add_u32 v106, v100, 4, v105
    v_lshl_add_u32 v107, v100, 3, v105
    v_mov_b32 v108, {FLAGS+16}
    L_wwd:
    ds_read_b32 v109, v108
    s_waitcnt lgkmcnt(0)
    v_readfirstlane_b32 s{sT0}, v109
    s_cmp_ge_u32 s{sT0}, 4
    s_cbranch_scc1 L_wd_ok
    s_sleep 1
    s_branch L_wwd
    L_wd_ok:
    ds_read_b128 v[32:35], v106
    ds_read_b64 v[36:37], v107 offset:64""")
    for ct in range(5):
        b0 = 40 + 6 * ct
        A(f"ds_read_b64_tr_b16 v[{b0}:{b0+1}], v103 offset:{ct*32}")
        A(f"ds_read_b64_tr_b16 v[{b0+2}:{b0+3}], v103 offset:{ct*32 + 1024}")
        A(f"ds_read_b64_tr_b16 v[{b0+4}:{b0+5}], v104 offset:{ct*32 + 32*256}")
    A("s_waitcnt lgkmcnt(0)")
    for ct in range(5):
        b0 = 40 + 6 * ct; d0 = 72 + 4 * ct
        A(f"v_mfma_f32_16x16x32_bf16 v[{d0}:{d0+3}], v[32:35], v[{b0}:{b0+3}], 0")
    for ct in range(5):
        b0 = 40 + 6 * ct; d0 = 72 + 4 * ct
        A(f"v_mfma_f32_16x16x16_bf16 v[{d0}:{d0+3}], v[36:37], v[{b0+4}:{b0+5}], v[{d0}:{d0+3}]")
    A(f"""v_and_b32 v105, 15, v{vL}
    v_mul_u32_u24 v106, 320, v100
    v_lshl_add_u32 v106, v105, 2, v106
    s_lshl_b32 s{sT0}, s{sJ}, 5
    s_add_u32 s{sT0}, s{sT0}, s{sH}
    s_mul_i32 s{sT0}, s{sT0}, 640
    s_add_u32 s{sT0}, s{sT0}, {G_BASE}
    s_mov_b32 exec_lo, -1
    s_mov_b32 exec_hi, 0
    s_nop 4""")
    for ct in range(5):
        A(f"buffer_store_dword v{72+4*ct}, v106, {srd(R_WS)}, s{sT0} offen offset:{ct*64} sc1")
    A("s_mov_b64 exec, -1")
    A(f"s_cmp_eq_u32 s{sH}, 0")
    A("s_cbranch_scc0 L_nofinchk")
    A(f"s_mov_b32 s{sSP}, {P.SPIN}")
    A(f"v_lshlrev_b32 v100, 2, v{vL}")
    A(f"v_and_b32 v101, 15, v{vL}")
    A("L_poll2:")
    A(f"""buffer_load_dword v102, v100, {srd(R_DBG)}, 0 offen sc1
    s_waitcnt vmcnt(0)
    v_cmp_gt_u32 vcc, 8, v102
    v_cmp_gt_u32 s[{sT0}:{sT0+1}], 8, v101
    s_nop 1
    s_and_b64 vcc, vcc, s[{sT0}:{sT0+1}]
    s_cbranch_vccz L_nofinchk
    s_sleep 8
    s_sub_u32 s{sSP}, s{sSP}, 1
    s_cmp_lg_u32 s{sSP}, 0
    s_cbranch_scc1 L_poll2
    L_nofinchk:""")
    A("s_waitcnt vmcnt(0)")
    A("s_setprio 0")
    stream(P.D0, N0, "c", False)

    A("L_tail:")
    A("s_nop 2")
    for i in range(3):
        for e in range(4): A(f"v_permlane32_swap_b32 v{vACC+8*i+e}, v{vACC+8*i+e+4}")
    for i in range(3):
        for e in range(4): A(f"v_add_f32 v{vACC+8*i+e}, v{vACC+8*i+e}, v{vACC+8*i+e+4}")
    for i in range(3):
        for e in range(2): A(f"v_permlane16_swap_b32 v{vACC+8*i+e}, v{vACC+8*i+e+2}")
    for i in range(3):
        for e in range(2): A(f"v_add_f32 v{vACC+8*i+e}, v{vACC+8*i+e}, v{vACC+8*i+e+2}")
    for i in range(3):
        X, Y = vACC + 8 * i, vACC + 8 * i + 1
        A(f"v_cndmask_b32 v{vACC+8*i+2}, v{X}, v{Y}, s[{sM8}:{sM8+1}]")
        A(f"v_cndmask_b32 v{vACC+8*i+3}, v{Y}, v{X}, s[{sM8}:{sM8+1}]")
    A("s_nop 1")
    for i in range(3):
        A(f"v_add_f32_dpp v{vACC+8*i}, v{vACC+8*i+3}, v{vACC+8*i+2} row_ror:8 row_mask:0xf bank_mask:0xf")
    A(f"""v_and_b32 v{vT}, 7, v{vL}
    v_lshlrev_b32 v{vT}, 5, v{vT}
    v_lshrrev_b32 v{vT+1}, 3, v{vL}
    v_lshl_add_u32 v{vT}, v{vT+1}, 2, v{vT}
    s_mul_i32 s{sT0}, s{sW}, {RED_STRIDE}
    s_add_u32 s{sT0}, s{sT0}, {RED}
    v_add_u32 v{vT}, s{sT0}, v{vT}""")
    for i in range(3):
        A(f"v_mul_f32 v{vACC+8*i}, v{vACC+8*i}, v{vFW}")
        A(f"ds_write_b32 v{vT}, v{vACC+8*i} offset:{i*256}")
    A(f"""s_lshl_b32 s{sT0}, s{sW}, 2
    s_add_u32 s{sT0}, s{sT0}, {LW}
    v_mov_b32 v{vT+1}, s{sT0}
    s_mov_b64 exec, 1
    ds_write_b32 v{vT+1}, v{vLW}
    s_mov_b64 exec, -1
    s_waitcnt lgkmcnt(0)
    s_barrier""")
    stamp(9)
    A(f"s_lshl_b32 s{sT1}, s{sID}, 10")
    A(f"s_add_u32 s{sT1}, s{sT1}, {H1_BASE}")
    A(f"s_cmp_ge_u32 s{sW}, 12")
    A("s_cbranch_scc1 L_ml")
    A(f"""v_and_b32 v32, 15, v{vL}
    v_mul_u32_u24 v32, {RED_STRIDE}, v32
    v_lshrrev_b32 v33, 4, v{vL}
    s_lshl_b32 s{sT0}, s{sW}, 2
    v_add_u32 v33, s{sT0}, v33
    v_lshlrev_b32 v33, 4, v33
    v_add_u32 v32, v32, v33
    ds_read_b128 v[36:39], v32 offset:{RED}
    s_waitcnt lgkmcnt(0)""")
    for sh in (8, 4, 2, 1):
        A("s_nop 0")
        for c in range(4):
            A(f"v_add_f32_dpp v{36+c}, v{36+c}, v{36+c} row_ror:{sh} row_mask:0xf bank_mask:0xf")
    A(f"""s_mov_b32 exec_lo, 0x00010001
    s_mov_b32 exec_hi, 0x00010001
    buffer_store_dwordx4 v[36:39], v33, {srd(R_WS)}, s{sT1} offen sc1
    s_mov_b64 exec, -1
    s_branch L_h1
    L_ml:
    s_cmp_eq_u32 s{sW}, 12
    s_cbranch_scc0 L_h1
    v_and_b32 v32, 15, v{vL}
    v_lshlrev_b32 v32, 2, v32
    ds_read_b32 v37, v32 offset:{LW}
    s_waitcnt lgkmcnt(0)""")
    for sh in (8, 4, 2, 1):
        A("s_nop 1")
        A(f"v_add_f32_dpp v37, v37, v37 row_ror:{sh} row_mask:0xf bank_mask:0xf")
    A(f"""v_mov_b32 v36, v{vM2}
    v_mov_b32 v38, 0
    v_mov_b32 v39, 0
    v_mov_b32 v33, 768
    s_mov_b64 exec, 1
    buffer_store_dwordx4 v[36:39], v33, {srd(R_WS)}, s{sT1} offen sc1
    s_mov_b64 exec, -1
    L_h1:""")
    A(f"s_cmp_ge_u32 s{sW}, 2")
    A("s_cbranch_scc1 L_h1_done")
    A(f"""s_lshl_b32 s{sT0}, s{sH}, 3
    s_lshl_b32 s{sT1}, s{sW}, 2
    s_add_u32 s{sT0}, s{sT0}, s{sT1}
    s_lshl_b32 s{sT0}, s{sT0}, 10
    s_add_u32 s{sT0}, s{sT0}, {H1_BASE}
    s_add_u32 s{sT1}, s{sT0}, 1024
    s_add_u32 s{sT2}, s{sT0}, 2048
    s_add_u32 s{sT3}, s{sT0}, 3072
    v_lshlrev_b32 v32, 4, v{vL}
    s_mov_b32 exec_lo, -1
    s_mov_b32 exec_hi, 0xffff
    s_mov_b32 s{sSP}, {P.SPIN}
    L_poll3:""")
    for s_ in range(4):
        A(f"buffer_load_dwordx4 v[{36+4*s_}:{39+4*s_}], v32, {srd(R_WS)}, s{sT0+s_} offen sc1")
        A(f"buffer_load_dwordx2 v[{52+2*s_}:{53+2*s_}], off, {srd(R_WS)}, s{sT0+s_} offset:768 sc1")
    A("s_waitcnt vmcnt(0)")
    A("v_max3_u32 v60, v36, v37, v38")
    for k in range(39, 59, 2): A(f"v_max3_u32 v60, v60, v{k}, v{k+1}")
    A("v_max_u32 v60, v60, v59")
    A(f"""v_cmp_eq_u32 vcc, -1, v60
    s_cbranch_vccz L_poll3_ok
    s_sub_u32 s{sSP}, s{sSP}, 1
    s_cmp_lg_u32 s{sSP}, 0
    s_cbranch_scc1 L_poll3
    L_poll3_ok:""")
    stamp(11)
    A("""v_max3_f32 v60, v52, v54, v56
    v_max_f32 v60, v60, v58""")
    for s_ in range(4): A(f"v_sub_f32 v{52+2*s_}, v{52+2*s_}, v60")
    for s_ in range(4): A(f"v_exp_f32 v{52+2*s_}, v{52+2*s_}")
    A("s_nop 0")
    A("v_mul_f32 v61, v52, v53")
    for s_ in range(1, 4): A(f"v_fmac_f32 v61, v{52+2*s_}, v{53+2*s_}")
    A("v_rcp_f32 v61, v61")
    A("s_nop 0")
    for s_ in range(4): A(f"v_mul_f32 v{52+2*s_}, v{52+2*s_}, v61")
    for c in range(4): A(f"v_mul_f32 v{36+c}, v{36+c}, v52")
    for s_ in range(1, 4):
        for c in range(4): A(f"v_fmac_f32 v{36+c}, v{36+4*s_+c}, v{52+2*s_}")
    A(f"""v_cvt_pk_bf16_f32 v40, v36, v37
    v_cvt_pk_bf16_f32 v41, v38, v39
    s_mul_i32 s{sT0}, s{sW}, 384
    s_add_u32 s{sT0}, s{sT0}, {OBF}
    v_lshlrev_b32 v32, 3, v{vL}
    v_add_u32 v32, s{sT0}, v32
    ds_write_b64 v32, v[40:41]
    s_mov_b64 exec, -1
    L_h1_done:
    s_waitcnt vmcnt(0) lgkmcnt(0)
    s_barrier""")
    A(f"s_sub_u32 s{sT0}, s{sW}, 2")
    A(f"s_cmp_lt_u32 s{sT0}, 5")
    A("s_cbranch_scc0 L_t3_done")
    A(f"""v_lshrrev_b32 v100, 4, v{vL}
    v_bfe_u32 v101, v{vL}, 2, 2
    v_and_b32 v102, 3, v{vL}
    v_lshlrev_b32 v102, 3, v102
    v_lshl_add_u32 v102, v101, 8, v102
    v_lshl_add_u32 v103, v100, 11, v102
    s_lshl_b32 s{sT1}, s{sT0}, 5
    v_add_u32 v103, s{sT1}, v103
    v_add_u32 v103, {WO}, v103
    v_and_b32 v105, 1, v101
    v_mul_u32_u24 v105, 384, v105
    v_lshl_add_u32 v105, v100, 4, v105""")
    for ks in range(6):
        A(f"ds_read_b128 v[{8+4*ks}:{11+4*ks}], v105 offset:{OBF + ks*64}")
    for ks in range(6):
        A(f"ds_read_b64_tr_b16 v[{32+4*ks}:{33+4*ks}], v103 offset:{ks*8192}")
        A(f"ds_read_b64_tr_b16 v[{34+4*ks}:{35+4*ks}], v103 offset:{ks*8192 + 1024}")
    A("s_waitcnt lgkmcnt(0)")
    A("v_mfma_f32_16x16x32_bf16 v[60:63], v[8:11], v[32:35], 0")
    A("v_mfma_f32_16x16x32_bf16 v[64:67], v[12:15], v[36:39], 0")
    for ks in range(2, 6):
        d = 60 + 4 * (ks & 1)
        A(f"v_mfma_f32_16x16x32_bf16 v[{d}:{d+3}], v[{8+4*ks}:{11+4*ks}], v[{32+4*ks}:{35+4*ks}], v[{d}:{d+3}]")
    A(f"""v_and_b32 v105, 15, v{vL}
    v_mul_u32_u24 v106, 320, v100
    v_lshl_add_u32 v106, v105, 2, v106
    s_lshl_b32 s{sT2}, s{sJ}, 5
    s_add_u32 s{sT2}, s{sT2}, s{sH}
    s_mul_i32 s{sT2}, s{sT2}, 640
    s_add_u32 s{sT2}, s{sT2}, {S_BASE}
    s_add_u32 s{sT2}, s{sT2}, s{sT1}
    s_add_u32 s{sT2}, s{sT2}, s{sT1}
    s_nop 4
    v_add_f32 v60, v60, v64
    s_mov_b32 exec_lo, -1
    s_mov_b32 exec_hi, 0
    buffer_store_dword v60, v106, {srd(R_WS)}, s{sT2} offen sc1
    s_mov_b64 exec, -1
    L_t3_done:""")
    stamp(13)
    A(f"s_cmp_eq_u32 s{sH}, 0")
    A("s_cbranch_scc0 L_fin_end")
    A(f"""v_lshrrev_b32 v100, 2, v0
    v_cmp_le_u32 vcc, 80, v100
    v_mov_b32 v101, 0
    v_mov_b32 v102, {1280 - 160}
    v_cndmask_b32 v101, v101, v102, vcc
    v_lshl_add_u32 v101, v100, 1, v101
    s_mul_i32 s{sT0}, s{sJ}, 160
    v_add_u32 v101, s{sT0}, v101
    buffer_load_ushort v103, v101, {srd(R_X)}, 0 offen
    s_lshl_b32 s{sT0}, s{sJ}, 5
    s_lshl_b32 s{sT1}, s{sW}, 1
    s_add_u32 s{sT0}, s{sT0}, s{sT1}
    s_mul_i32 s{sT0}, s{sT0}, 640
    s_add_u32 s{sT1}, s{sT0}, {S_BASE+640}
    s_add_u32 s{sT2}, s{sT0}, {G_BASE}
    s_add_u32 s{sT3}, s{sT0}, {G_BASE+640}
    s_add_u32 s{sT0}, s{sT0}, {S_BASE}
    v_lshlrev_b32 v32, 4, v{vL}
    s_mov_b32 exec_lo, -1
    s_mov_b32 exec_hi, 0xff
    s_mov_b32 s{sSP}, {P.SPIN}
    L_poll4:""")
    for s_ in range(4):
        A(f"buffer_load_dwordx4 v[{36+4*s_}:{39+4*s_}], v32, {srd(R_WS)}, s{sT0+s_} offen sc1")
    A("s_waitcnt vmcnt(0)")
    A("v_max3_u32 v60, v36, v37, v38")
    for k in range(39, 51, 2): A(f"v_max3_u32 v60, v60, v{k}, v{k+1}")
    A("v_max_u32 v60, v60, v51")
    A(f"""v_cmp_eq_u32 vcc, -1, v60
    s_cbranch_vccz L_poll4_ok
    s_sub_u32 s{sSP}, s{sSP}, 1
    s_cmp_lg_u32 s{sSP}, 0
    s_cbranch_scc1 L_poll4
    L_poll4_ok:""")
    stamp(14)
    for c in range(4):
        A(f"v_add_f32 v{36+c}, v{36+c}, v{40+c}")
        A(f"v_add_f32 v{44+c}, v{44+c}, v{48+c}")
    A(f"""s_mul_i32 s{sT0}, s{sW}, {FIN_STRIDE}
    v_add_u32 v32, s{sT0}, v32
    ds_write_b128 v32, v[36:39] offset:{FIN}
    ds_write_b128 v32, v[44:47] offset:{FIN+640}
    s_mov_b64 exec, -1
    s_waitcnt lgkmcnt(0)
    s_barrier
    s_cmp_ge_u32 s{sW}, 10
    s_cbranch_scc1 L_fin_end
    v_and_b32 v32, 3, v{vL}
    v_mul_u32_u24 v32, {FIN_STRIDE}, v32
    v_lshl_add_u32 v32, v100, 2, v32""")
    for ii in range(4):
        A(f"ds_read_b32 v{36+ii}, v32 offset:{FIN + ii*4*FIN_STRIDE}")
        A(f"ds_read_b32 v{40+ii}, v32 offset:{FIN + ii*4*FIN_STRIDE + 640}")
    A("s_waitcnt lgkmcnt(0)")
    A("""v_add_f32 v36, v36, v37
    v_add_f32 v38, v38, v39
    v_add_f32 v40, v40, v41
    v_add_f32 v42, v42, v43
    v_add_f32 v36, v36, v38
    v_add_f32 v40, v40, v42
    s_nop 1
    v_add_f32_dpp v36, v36, v36 quad_perm:[1,0,3,2] row_mask:0xf bank_mask:0xf
    v_add_f32_dpp v40, v40, v40 quad_perm:[1,0,3,2] row_mask:0xf bank_mask:0xf
    s_nop 1
    v_add_f32_dpp v36, v36, v36 quad_perm:[2,3,0,1] row_mask:0xf bank_mask:0xf
    v_add_f32_dpp v40, v40, v40 quad_perm:[2,3,0,1] row_mask:0xf bank_mask:0xf
    v_cvt_pk_bf16_f32 v36, v36, v40
    v_and_b32 v40, 0xffff0000, v36
    v_lshlrev_b32 v36, 16, v36""")
    A(f"""v_mul_f32 v41, {hex(LOG2E ^ 0x80000000)}, v40
    v_exp_f32 v41, v41
    s_nop 0
    v_add_f32 v41, 1.0, v41
    v_rcp_f32 v41, v41
    s_nop 0
    v_mul_f32 v40, v40, v41""")
    round_bf16(40)
    A("v_mul_f32 v36, v36, v40")
    round_bf16(36)
    A(f"""v_lshlrev_b32 v103, 16, v103
    v_add_f32 v36, v103, v36
    v_cvt_pk_bf16_f32 v36, v36, v36
    s_mov_b32 exec_lo, 0x11111111
    s_mov_b32 exec_hi, 0x11111111
    buffer_store_short v36, v101, {srd(R_OUT)}, 0 offen
    L_fin_end:""")
    if P.STAMPS:
        stamp(15)
        A(f"""s_mov_b64 exec, -1
        s_lshl_b32 s{sT0}, s2, 4
        s_add_u32 s{sT0}, s{sT0}, s{sW}
        s_lshl_b32 s{sT0}, s{sT0}, 7
        s_add_u32 s100, s{S_WS}, {STAMP_BASE}
        s_addc_u32 s101, s{S_WS+1}, 0""")
        A(f"""s_mov_b32 s32, s100
        s_mov_b32 s33, s101
        s_mov_b32 s34, 0x1000000
        s_mov_b32 s35, 0x20000
        v_lshlrev_b32 v32, 2, v{vL}
        s_mov_b32 exec_lo, -1
        s_mov_b32 exec_hi, 0
        buffer_store_dword v{vSTAMP}, v32, s[32:35], s{sT0} offen""")
    A("L_end:")
    A("s_endpgm")
    A.footer(128, 102)
    return A.text()

if __name__ == "__main__":
    from build import build
    out = sys.argv[1] if len(sys.argv) > 1 else "main.s"
    for a in sys.argv[2:]:
        k, v = a.split("=")
        setattr(P, k, eval(v))
    open(out, "w").write(gen())
    build(out, out + ".co")
```
